```python
import torch

def _softmax(x, axis=-1):
    return torch.softmax(x, dim=axis)
def _gelu(x):
    return torch.nn.functional.gelu(x, approximate="tanh")
def _silu(x):
    return torch.nn.functional.silu(x)
def _sigmoid(x):
    return torch.sigmoid(x)
def _layernorm(x, axis=-1, eps=1e-5):
    m = x.mean(dim=axis, keepdim=True)
    v = x.var(dim=axis, keepdim=True, unbiased=False)
    return (x - m) / torch.sqrt(v + eps)
def _scatter_add(tgt, idx, src, axis=0):
    return tgt.clone().index_add_(axis, idx, src)
def _segment_sum(src, seg, n):
    out = torch.zeros((n,) + src.shape[1:], dtype=src.dtype)
    return out.index_add_(0, seg, src)
def _pad(x, pw):
    flat = tuple(v for pair in reversed(pw) for v in pair)
    return torch.nn.functional.pad(x, flat)

kernel_name = 'gated_mix__mha_block_cached__swiglu_ffn__decode'

def setup_inputs():

    _w = (lambda a: (lambda t: t.to(torch.bfloat16) if t.is_floating_point() else t)(torch.as_tensor(a)))
    def _A_setup():
        B, Sq, D = 2, 1, 640
        H, Sk, Dh = 32, 8192, 128
        return {
            "x": _w((lambda *s: torch.randn(*s, dtype=torch.bfloat16) * 0.05)(B, Sq, D)),
            "k_cache": _w((lambda *s: torch.randn(*s, dtype=torch.bfloat16) * 6.4)(B, H, Sk, Dh)),
            "v_cache": _w((lambda *s: torch.randn(*s, dtype=torch.bfloat16) * 0.2)(B, H, Sk, Dh)),
            "wq": _w((lambda *s: torch.randn(*s, dtype=torch.bfloat16) * 6.4)(D, H * Dh) * (D ** -0.5)),
            "wo": _w((lambda *s: torch.randn(*s, dtype=torch.bfloat16) * 0.2)(H * Dh, D) * ((H * Dh) ** -0.5)),
        }
    _A_in = _A_setup()

    def _B_setup():
        B, S, D, F = 2, 1, 640, 1728
        return {
            "x": _w((lambda *s: torch.randn(*s, dtype=torch.bfloat16) * 0.05)(B, S, D)),
            "w_gate": _w((lambda *s: torch.randn(*s, dtype=torch.bfloat16) * 0.05)(D, F)),
            "w_up": _w((lambda *s: torch.randn(*s, dtype=torch.bfloat16) * 0.05)(D, F)),
            "w_down": _w((lambda *s: torch.randn(*s, dtype=torch.bfloat16) * 0.05)(F, D)),
        }
    _B_in = _B_setup()

    return {
        "A_x": _A_in["x"],
        "A_k_cache": _A_in["k_cache"],
        "A_v_cache": _A_in["v_cache"],
        "A_wq": _A_in["wq"],
        "A_wo": _A_in["wo"],
        "B_x": _B_in["x"],
        "B_w_gate": _B_in["w_gate"],
        "B_w_up": _B_in["w_up"],
        "B_w_down": _B_in["w_down"],
        "gate_w": _w((lambda *s: torch.randn(*s, dtype=torch.bfloat16) * 0.05)(640) * 16.0),
    }

def reference(A_x, A_k_cache, A_v_cache, A_wq, A_wo, B_x, B_w_gate, B_w_up, B_w_down, gate_w):
    def _A_ref(x, k_cache, v_cache, wq, wo):
        B, Sq, D = x.shape
        H, Dh = 32, 128
        q = (lambda x, *d: x.permute(*d))((x @ wq).reshape(B, Sq, H, Dh), 0, 2, 1, 3)
        scores = torch.einsum("bhqd,bhkd->bhqk", q, k_cache) * (Dh ** -0.5)
        p = _softmax(scores, axis=-1)
        o = torch.einsum("bhqk,bhkd->bhqd", p, v_cache)
        return (lambda x, *d: x.permute(*d))(o, 0, 2, 1, 3).reshape(B, Sq, H * Dh) @ wo

    def _B_ref(x, w_gate, w_up, w_down):
        g = _silu(x @ w_gate)
        u = x @ w_up
        return (g * u) @ w_down

    x = A_x
    g = _sigmoid((x * gate_w).sum(-1, keepdims=True))
    a = _A_ref(x, A_k_cache, A_v_cache, A_wq, A_wo)
    b = _B_ref(x, B_w_gate, B_w_up, B_w_down)
    return g * a + (1 - g) * b
```

```python
KN = "gated_mix__mha_block_cached__swiglu_ffn__decode_kernel"
HDR = open("gated_mix__mha_block_cached__swiglu_ffn__decode.s.ref").read().split("; Override launch")[0]
class Asm:
    def __init__(self):
        self.lines = []
    def __call__(self, s):
        for l in s.split("\n"):
            l = l.strip()
            if l: self.lines.append(("" if l.endswith(":") else "    ") + l)
    def text(self): return "\n".join(self.lines)
def wrap(body, grid, block, lds, vgpr=256, sgpr=102, accum=None, name=KN, DESC=''):
    accum = accum or ((min(vgpr,256)+3)//4*4)
    return (HDR + "; Override launch geometry by editing the next line.\n"
      f"; @launch grid=({grid},1,1) block=({block},1,1) lds={lds}\n" + DESC +
      ""
      '.amdgcn_target "amdgcn-amd-amdhsa--gfx950"\n.text\n'
      f".globl {name}\n.p2align 8\n.type {name},@function\n{name}:\n" + body + "\n"
      '.section .rodata,"a"\n.p2align 6\n'
      f".amdhsa_kernel {name}\n  .amdhsa_next_free_vgpr {vgpr}\n  .amdhsa_next_free_sgpr {sgpr}\n  .amdhsa_accum_offset {accum}\n"
      "  .amdhsa_group_segment_fixed_size 0\n  .amdhsa_kernarg_size 104\n  .amdhsa_user_sgpr_count 2\n"
      "  .amdhsa_user_sgpr_kernarg_segment_ptr 1\n  .amdhsa_system_sgpr_workgroup_id_x 1\n"
      "  .amdhsa_float_denorm_mode_32 3\n"
      ".end_amdhsa_kernel\n")
```

```python
import re
REG = re.compile(r'^(-?)(abs\()?([vsa])(\d+)\)?$|^(-?)([vsa])\[(\d+):(\d+)\]$')
def regs_of(tok):
    tok = tok.strip()
    if tok in ("vcc",): return [("s", "vcc_lo"), ("s", "vcc_hi")]
    if tok in ("vcc_lo", "vcc_hi"): return [("s", tok)]
    if tok == "exec": return [("s", "exec_lo"), ("s", "exec_hi")]
    if tok in ("exec_lo", "exec_hi"): return [("s", tok)]
    if tok == "m0": return [("s", "m0")]
    m = REG.match(tok)
    if not m: return []
    if m.group(3): return [(m.group(3), int(m.group(4)))]
    return [(m.group(6), i) for i in range(int(m.group(7)), int(m.group(8))+1)]
TRANS = ("v_exp_f32", "v_log_f32", "v_rcp_f32", "v_rsq_f32", "v_sqrt_f32", "v_sin_f32", "v_cos_f32")
class I:
    def __init__(self, text):
        self.text = text
        t = text.split(";")[0].strip()
        self.label = t[:-1] if t.endswith(":") else None
        self.op = None; self.dst = []; self.src = []; self.srcA = []; self.srcB = []; self.srcC = []
        self.dpp = False; self.kind = None; self.target = None; self.states = 0
        if self.label or not t or t.startswith("."): return
        parts = t.split(None, 1)
        op = parts[0]; self.op = op
        rest = parts[1] if len(parts) > 1 else ""
        self.states = 1
        if op == "s_nop": self.states = int(rest.strip(), 0) + 1
        ops = []; cur = ""; depth = 0
        for ch in rest:
            if ch == "[": depth += 1
            if ch == "]": depth -= 1
            if ch == "," and depth == 0: ops.append(cur); cur = ""
            else: cur += ch
        if cur.strip(): ops.append(cur)
        ops = [o.strip() for o in ops]
        mods = ""
        if ops:
            sp = ops[-1].split(None, 1)
            ops[-1] = sp[0]
            mods = sp[1] if len(sp) > 1 else ""
        self.ops = ops; self.mods = mods
        base = re.sub(r'_(e32|e64|dpp|sdwa)$', '', op); self.base = base
        R = lambda k: regs_of(ops[k]) if k < len(ops) else []
        allr = lambda a: sum([regs_of(o) for o in ops[a:]], [])
        if op.startswith("v_mfma"):
            self.kind = "mfma"; self.dst = R(0); self.srcA = R(1); self.srcB = R(2); self.srcC = R(3); self.src = self.srcA + self.srcB + self.srcC
            self.passes = 4 if "16x16x32" in op else (8 if "32x32x16" in op else (2 if "4x4x4" in op else 16))
        elif op.startswith("v_"):
            self.kind = "valu"
            self.dpp = op.endswith("_dpp") or any(k in mods for k in ("row_", "quad_perm", "row_bcast", "row_mirror", "row_half"))
            if base.startswith("v_cmp"):
                self.dst = R(0); self.src = allr(1)
                if base.startswith("v_cmpx"): self.dst = self.dst + regs_of("exec")
            elif base in ("v_add_co_u32", "v_sub_co_u32", "v_addc_co_u32", "v_subb_co_u32", "v_subrev_co_u32"):
                self.dst = R(0) + R(1); self.src = allr(2)
            elif base in ("v_permlane16_swap_b32", "v_permlane32_swap_b32"):
                self.dst = R(0) + R(1); self.src = R(0) + R(1)
            else:
                self.dst = R(0); self.src = allr(1)
                if base in ("v_fmac_f32", "v_dot2c_f32_bf16", "v_dot2c_f32_f16", "v_writelane_b32", "v_pk_fmac_f16") or (self.dpp and ("bank_mask" in mods and "bank_mask:0xf" not in mods or "row_mask" in mods and "row_mask:0xf" not in mods)):
                    self.src = self.src + R(0)
                if base == "v_cndmask_b32" and len(ops) == 3: self.src = self.src + regs_of("vcc")
            self.trans = base in TRANS
            self.dot = base.startswith("v_dot")
        elif op.startswith("ds_"):
            self.kind = "ds"
            if "read" in op or "bpermute" in op or "permute" in op or "swizzle" in op: self.dst = R(0); self.src = allr(1)
            else: self.src = allr(0)
        elif op.startswith("buffer_") or op.startswith("global_"):
            self.kind = "vmem"
            isld = "_load" in op
            if op.startswith("buffer_wbl2") or op.startswith("buffer_inv"): pass
            elif isld and "lds" not in mods.split() and "_lds_" not in op: self.dst = R(0); self.src = allr(1)
            elif "atomic" in op:
                self.src = allr(0)
                if "sc0" in mods.split(): self.dst = R(0)
                if op.startswith("global_atomic") and "sc0" in mods.split(): self.src = allr(1)
            else:
                self.src = allr(0)
                if "_store" in op:
                    self.store_data = R(0) if op.startswith("buffer_") else R(1)
                    self.wide = any(k in op for k in ("x3", "x4"))
        elif op.startswith("s_"):
            self.kind = "salu"
            if op.startswith("s_cbranch") or op == "s_branch": self.target = ops[0]; self.kind = "branch"
            elif op.startswith("s_cmp") or op in ("s_waitcnt", "s_barrier", "s_nop", "s_sleep", "s_setprio", "s_endpgm"): self.src = allr(0)
            elif op.startswith("s_load") or op.startswith("s_memtime") or op.startswith("s_memrealtime"): self.dst = R(0); self.src = allr(1); self.kind = "smem"
            elif "saveexec" in op: self.dst = R(0) + regs_of("exec"); self.src = allr(1) + regs_of("exec")
            else: self.dst = R(0); self.src = allr(1)
def need(p, c):
    n = 0
    P = set(p.dst);
    if p.kind == "valu":
        vw = {r for r in P if r[0] in "va"}; sw = {r for r in P if r[0] == "s"}
        cs = set(c.src)
        if c.kind == "valu":
            if c.dpp and (vw & cs): n = max(n, 2)
            if c.dpp and (sw & set(regs_of("exec"))): n = max(n, 5)
            if c.base in ("v_readlane_b32", "v_readfirstlane_b32") and (vw & set(regs_of(c.ops[1]))): n = max(n, 1)
            if c.base.startswith("v_permlane") and (vw & cs): n = max(n, 2)
            if sw & cs:
                n = max(n, 2)
                if c.base in ("v_readlane_b32", "v_writelane_b32") and (sw & set(regs_of(c.ops[2]))): n = max(n, 4)
            if sw & set(regs_of("exec")) and c.base in ("v_readlane_b32", "v_readfirstlane_b32", "v_writelane_b32"): n = max(n, 4)
            if p.trans and (vw & cs) : n = max(n, 1)
            if p.dot and (vw & (cs | set(c.dst))):
                same = (p.base == c.base)
                onlyC = same and (vw & set(c.dst)) and not (vw & set(sum([regs_of(o) for o in c.ops[1:3]], [])))
                if not onlyC: n = max(n, 3)
        if c.kind == "mfma":
            if vw & cs: n = max(n, 2)
            if p.dot and (vw & (cs | set(c.dst))): n = max(n, 3)
            if sw & set(regs_of("exec")): n = max(n, 4)
        if c.kind == "vmem" and (sw & cs): n = max(n, 5)
        if c.kind in ("vmem", "ds") and p.dot and (vw & cs): n = max(n, 3)
        if c.kind in ("vmem", "ds") and p.trans and (vw & cs): n = max(n, 1)
    if p.kind == "mfma":
        D = set(p.dst); ps = p.passes
        T = {2: (2, 4, 5, 5, 1), 4: (0, 6, 8, 8, 3), 8: (0, 10, 12, 12, 7), 16: (0, 18, 20, 20, 15)}[ps]
        if c.kind == "mfma":
            if D & set(c.srcA + c.srcB): n = max(n, T[2])
            if D & set(c.srcC):
                if c.srcC == p.dst and c.passes == p.passes: n = max(n, T[0])
                else: n = max(n, T[1])
            elif D & set(c.dst): n = max(n, T[1])
        elif c.kind in ("valu", "vmem", "ds"):
            if D & (set(c.src) | set(c.dst)): n = max(n, T[3])
        if c.kind == "valu" and (set(p.srcC) & set(c.dst)): n = max(n, T[4])
    if p.kind == "vmem" and hasattr(p, "store_data") and p.wide:
        if c.kind in ("valu",) and set(p.store_data) & set(c.dst): n = max(n, 2)
        elif c.kind in ("vmem", "ds", "mfma") and set(p.store_data) & set(c.dst): n = max(n, 1)
    if p.kind == "salu" and ("s", "m0") in P and c.kind == "vmem" and "lds" in (c.text): n = max(n, 1)
    return n
MAXD = 20
def fix(text):
    lines = text.split("\n")
    ins = [I(l) for l in lines]
    added = 0
    for _pass in range(4):
        changed = False
        k = 0
        lab = None
        while k < len(ins):
            if lab is None:
                lab = {x.label: i for i, x in enumerate(ins) if x.label}
                preds = {}
                for i, x in enumerate(ins):
                    if x.target: preds.setdefault(lab[x.target], []).append(i)
            c = ins[k]
            if not c.op or c.op == "s_nop" or c.kind in ("salu", "branch", "smem"):
                k += 1; continue
            short = 0
            stack = [(k, 0)]; seen = set()
            while stack:
                pos, d = stack.pop()
                ps = []
                if pos > 0 and ins[pos-1].op not in ("s_branch", "s_endpgm"): ps.append(pos-1)
                if ins[pos].label: ps += preds.get(pos, [])
                for p in ps:
                    x = ins[p]
                    if x.op:
                        n = need(x, c)
                        if n > d: short = max(short, n - d)
                    nd = d + x.states
                    if nd < MAXD and (p, nd) not in seen:
                        seen.add((p, nd)); stack.append((p, nd))
            if short:
                ins.insert(k, I(f"    s_nop {short-1}")); added += 1; changed = True; lab = None
                k += 1
            k += 1
        if not changed: break
    return "\n".join(x.text for x in ins), added
```

```python
import sys, struct
sys.path.insert(0, "work")
from asmlib import *
import hz

SENT = 0xFFFFFFFF
OOB = 0x7FFF0000
WS_Y = 0
WS_ML = 0xA0000
WS_Q = 0xA2000
WS_F1 = 0xE2000
WS_SIZE = 0x118000
WS_STAMP = 0x200000
L_QB, L_OP, L_YP, L_RP = 0, 2048, 4096, 0
L_ST = L_YP
LDS_BYTES = 16384
LOG2E = 1.4426950408889634
def f2u(f): return struct.unpack("<I", struct.pack("<f", f))[0]
def rev2(x): return ((x & 1) << 1) | ((x >> 1) & 1)
FULL = "row_mask:0xf bank_mask:0xf"

def gen(depth=32, sflag="nt", wflag="nt", woflag=None, stamps=0, spin_max=1 << 16, mimic=1, wo_pace=0, sleep=4, thr=6, vthr=0):
    a = Asm()
    SF = (" " + sflag) if sflag else ""
    WF = (" " + wflag) if wflag else ""
    WOF = WF if woflag is None else ((" " + woflag) if woflag else "")
    RING = 256 - depth*4
    def ring(s): return f"v[{RING+4*s}:{RING+4*s+3}]"
    def ringr(s, r): return f"v{RING+4*s+r}"
    W0 = 96
    def wreg(t): return f"v[{W0+4*t}:{W0+4*t+3}]"
    def stamp(k):
        if stamps: a(f"s_memrealtime s[{72+2*k}:{73+2*k}]")
    def xstamp(k):
        if stamps: a(f"s_memrealtime s[{88+2*k}:{89+2*k}]")
    def lgkm(n): a(f"s_waitcnt lgkmcnt({0 if stamps else n})")
    def allreduce(op, v):
        for rr in (8, 4, 2, 1): a(f"{op}_dpp v{v}, v{v}, v{v} row_ror:{rr} {FULL}")
        a(f"v_readlane_b32 s54, v{v}, 0\n v_readlane_b32 s55, v{v}, 16\n v_readlane_b32 s56, v{v}, 32\n v_readlane_b32 s58, v{v}, 48")
        a(f"v_mov_b32 v{v}, s54\n {op} v{v}, s55, v{v}\n {op} v{v}, s56, v{v}\n {op} v{v}, s58, v{v}")
    def rbf(v):
        a(f"v_cvt_pk_bf16_f32 v{v}, v{v}, v{v}\n v_lshlrev_b32 v{v}, 16, v{v}")
    def srd(base, lo, hi, size):
        a(f"s_mov_b32 s{base}, s{lo}\n s_mov_b32 s{base+1}, s{hi}\n s_mov_b32 s{base+2}, {size}\n s_mov_b32 s{base+3}, 0x20000")
    def mfma(d, A, B, C=None):
        a(f"v_mfma_f32_16x16x32_bf16 v[{d}:{d+3}], v[{A}:{A+3}], {B}, " + (C if C is not None else f"v[{d}:{d+3}]"))
    def perms(A, X, sel):
        for r in range(4): a(f"v_perm_b32 v{A+r}, v{X}, v{X}, v{sel+r}")
    a(f"""
    s_cmp_ge_u32 s2, 256
    s_cbranch_scc1 L_end
    s_load_dwordx16 s[4:19], s[0:1], 0
    s_load_dwordx8 s[20:27], s[0:1], 64
    s_load_dwordx2 s[28:29], s[0:1], 96
    """)
    stamp(0)
    a(f"""
    v_lshrrev_b32 v2, 6, v0
    v_and_b32 v1, 63, v0
    s_and_b32 s54, s2, 7             ; x
    v_readfirstlane_b32 s3, v2       ; wave
    s_lshr_b32 s55, s2, 3            ; j
    s_and_b32 s30, s55, 3
    s_lshl_b32 s56, s54, 2
    s_add_u32 s30, s30, s56          ; h = 4x + (j&3)
    s_bfe_u32 s31, s55, 0x10002      ; b = (j>>2)&1
    s_lshr_b32 s32, s55, 3           ; split
    s_lshl_b32 s33, s31, 5
    s_add_u32 s33, s33, s30          ; bh
    s_lshl_b32 s34, s33, 2
    s_add_u32 s34, s34, s32
    v_and_b32 v3, 15, v1             ; c
    v_lshrrev_b32 v2, 4, v1          ; g
    s_cmp_ge_u32 s3, 4
    s_cbranch_scc1 L_stream
    """)
    def selectors():
        a(f"""
        v_and_b32 v70, 1, v3
        v_mov_b32 v71, 0x0c0c0100
        v_mov_b32 v72, 0x01000c0c
        v_mov_b32 v73, 0x0c0c0302
        v_mov_b32 v74, 0x03020c0c
        v_cmp_eq_u32 vcc, 1, v70
        v_cndmask_b32 v71, v71, v72, vcc
        v_cndmask_b32 v73, v73, v74, vcc
        v_mov_b32 v75, 0x0c0c0c0c
        v_bfe_u32 v70, v3, 1, 2
        """)
        for r in range(4):
            a(f"v_cmp_eq_u32 vcc, {r}, v70\n v_cndmask_b32 v{8+r}, v75, v71, vcc\n v_cndmask_b32 v{12+r}, v75, v73, vcc")
    def tile20(extra=0):
        for t in range(20):
            A = 16 + 4*(t & 1)
            perms(A, 44 + (t >> 1), 8 + 4*(t & 1))
            a(f"s_waitcnt vmcnt({19-t+extra})")
            mfma(24, A, wreg(t), "0" if t == 0 else None)
    def tau_fg():
        a(f"""
        s_and_b32 s54, s2, 7                 ; x
        s_lshr_b32 s55, s2, 3                ; j
        s_lshr_b32 s56, s54, 1               ; x>>1
        s_mul_i32 s57, s56, 22
        s_add_u32 s57, s57, 128
        s_add_u32 s57, s57, s55
        s_cmp_ge_u32 s55, 22
        s_cselect_b32 s57, 999, s57          ; odd x
        s_lshl_b32 s35, s56, 5
        s_add_u32 s35, s35, s55              ; even x
        s_bitcmp1_b32 s54, 0
        s_cselect_b32 s35, s57, s35          ; tau: gate/up tile (>= 216: none)
        s_lshl_b32 s57, s32, 2
        s_and_b32 s59, s55, 3
        s_add_u32 s57, s57, s59              ; jb
        s_mul_i32 s59, s56, 11
        s_add_u32 s59, s59, s57
        s_add_u32 s59, s59, 59               ; 64 + 11*(x>>1) + jb - 5
        s_cmp_lt_u32 s57, 5
        s_cselect_b32 s59, 999, s59
        s_lshl_b32 s61, s56, 4
        s_add_u32 s61, s61, s57
        s_bitcmp1_b32 s54, 0
        s_cselect_b32 s61, s59, s61          ; fg: w_down row group (>= 108: none)
        """)
    def slot_offset():
        a(f"""
        v_lshrrev_b32 v7, 1, v2
        v_lshlrev_b32 v7, 9, v7              ; bb*512
        v_and_b32 v5, 1, v2
        v_lshl_add_u32 v7, v5, 4, v7
        v_lshl_add_u32 v7, v3, 5, v7
        """)
    a(f"""
    s_lshl_b32 s57, s31, 2
    s_add_u32 s57, s57, s32
    s_lshl_b32 s60, s30, 3
    s_add_u32 s60, s60, s57
    s_cmp_eq_u32 s3, 0
    s_cbranch_scc0 L_a_notw0
    s_mul_i32 s57, s57, 80
    v_mad_u32_u24 v4, v2, 20, s57
    v_lshrrev_b32 v6, 3, v3
    v_mul_u32_u24 v6, 1280, v6           ; bb*1280
    v_lshl_add_u32 v5, v4, 1, v6         ; x offset
    s_lshl_b32 s57, s30, 8
    v_lshlrev_b32 v4, 13, v4
    v_lshl_add_u32 v7, v3, 4, s57
    v_add_u32 v4, v4, v7
    s_mov_b32 s48, 0
    s_movk_i32 s49, 0x2000
    """)
    a("v_mov_b32 v55, v5")
    slot_offset()
    a(f"""
    v_mov_b32 v5, v55
    s_lshl_b32 s58, s60, 10
    s_add_u32 s58, s58, {WS_Q}
    s_lshl_b32 s56, s30, 13
    s_lshl_b32 s57, s31, 9
    s_add_u32 s56, s56, s57
    s_add_u32 s56, s56, {WS_Q}
    s_add_u32 s57, s56, 4096
    v_lshlrev_b32 v6, 3, v1
    s_waitcnt lgkmcnt(0)
    """)
    srd(40, 28, 29, hex(WS_SIZE))
    a(f"""
    buffer_load_dwordx4 v[28:31], v7, s[40:43], s58 offen sc1
    """)
    for rb in range(8):
        a(f"buffer_load_dwordx2 v[{80+2*rb}:{81+2*rb}], v6, s[40:43], {'s56' if rb < 4 else 's57'} offen offset:{(rb & 3)*1024} sc1")
    srd(44, 4, 5, 2560)
    srd(36, 10, 11, 5242880)
    for k in range(5): a(f"buffer_load_dwordx2 v[{44+2*k}:{45+2*k}], v5, s[44:47], 0 offen offset:{8*k}")
    for t in range(20):
        a(f"buffer_load_dwordx4 {wreg(t)}, v4, s[36:39], s48 offen{WF}")
        if t < 19: a("s_add_u32 s48, s48, s49")
    selectors()
    srd(64, 26, 27, 256)
    a(f"""
    s_lshl_b32 s59, s30, 3
    v_mov_b32 v54, s59
    s_waitcnt vmcnt(20)
    """)
    tile20()
    xstamp(0)
    a("v_lshlrev_b32 v5, 2, v1")
    for k in range(4): a(f"v_not_b32 v{28+k}, v{28+k}")
    for k in range(4): a(f"v_bfi_b32 v{24+k}, 1, v{28+k}, v{24+k}")
    a(f"""
    buffer_store_dwordx4 v[24:27], v7, s[40:43], s58 offen sc1
    s_mov_b32 s49, 0
L_a_qp:
    """)
    for rb in range(8):
        a(f"buffer_load_dwordx2 v[{64+2*rb}:{65+2*rb}], v6, s[40:43], {'s56' if rb < 4 else 's57'} offen offset:{(rb & 3)*1024} sc1")
    a("s_add_u32 s49, s49, 1\n s_waitcnt vmcnt(0)")
    for k in range(16): a(f"v_xor_b32 v{28 if k == 0 else 29}, v{64+k}, v{80+k}" + ("" if k == 0 else "\n v_and_b32 v28, v28, v29"))
    a(f"""
    v_and_b32 v28, 1, v28
    v_cmp_eq_u32 vcc, 0, v28
    s_cmp_ge_u32 s49, {spin_max}
    s_cbranch_scc1 L_a_q_got
    s_cbranch_vccz L_a_q_got
    s_cmp_lt_u32 s49, 6
    s_cbranch_scc1 L_a_qp
    s_cmp_eq_u32 s49, 6
    s_cbranch_scc0 L_a_q_noset
    v_mov_b32 v28, {OOB:#x}
    v_mov_b32 v29, s60
    v_cmp_eq_u32 vcc, 0, v1
    v_cndmask_b32 v28, v28, v29, vcc
    v_mov_b32 v29, 1
    buffer_store_byte v29, v28, s[64:67], 0 offen sc1
L_a_q_noset:
    buffer_load_dwordx2 v[28:29], v54, s[64:67], 0 offen sc1
    s_mov_b32 s59, 0x01010101
    s_waitcnt vmcnt(0)
    v_and_b32 v28, v28, v29
    v_and_b32 v28, s59, v28
    s_nop 0
    v_readfirstlane_b32 s55, v28
    s_cmp_eq_u32 s55, s59
    s_cbranch_scc1 L_a_q_flagged
    s_sleep 8
    s_branch L_a_qp
L_a_q_flagged:
    """)
    for rb in range(8):
        a(f"buffer_load_dwordx2 v[{64+2*rb}:{65+2*rb}], v6, s[40:43], {'s56' if rb < 4 else 's57'} offen offset:{(rb & 3)*1024} sc1")
    a("s_waitcnt vmcnt(0)\nL_a_q_got:")
    xstamp(1)
    if stamps: a("s_mov_b32 s92, s49")
    for k in range(2):
        a(f"""
        v_add_f32 v{64+k}, v{64+k}, v{66+k}
        v_add_f32 v{68+k}, v{68+k}, v{70+k}
        v_add_f32 v{72+k}, v{72+k}, v{74+k}
        v_add_f32 v{76+k}, v{76+k}, v{78+k}
        v_add_f32 v{64+k}, v{64+k}, v{68+k}
        v_add_f32 v{72+k}, v{72+k}, v{76+k}
        v_add_f32 v{64+k}, v{64+k}, v{72+k}
        """)
    a(f"""
    v_cvt_pk_bf16_f32 v64, v64, v65
    ds_write_b32 v5, v64 offset:{L_QB}
    s_waitcnt lgkmcnt(0)
    s_branch L_a_barA
L_a_notw0:
    s_waitcnt lgkmcnt(0)
    """)
    srd(44, 4, 5, 2560)
    srd(40, 28, 29, hex(WS_SIZE))
    srd(64, 26, 27, 256)
    tau_fg()
    a(f"""
    s_cmp_eq_u32 s3, 2
    s_cbranch_scc0 L_a_noclear
    v_mov_b32 v64, {SENT:#x}
    v_mov_b32 v65, v64
    v_mov_b32 v66, v64
    v_mov_b32 v67, v64
    v_lshlrev_b32 v68, 4, v1
    s_mul_i32 s56, s34, 2560
    v_mov_b32 v70, {OOB:#x}
    v_cmp_gt_u32 vcc, 32, v1
    v_cndmask_b32 v69, v70, v68, vcc
    buffer_store_dwordx4 v[64:67], v68, s[40:43], s56 offen sc1
    buffer_store_dwordx4 v[64:67], v68, s[40:43], s56 offen offset:1024 sc1
    buffer_store_dwordx4 v[64:67], v69, s[40:43], s56 offen offset:2048 sc1
    s_lshl_b32 s56, s34, 5
    s_add_u32 s56, s56, {WS_ML}
    v_cmp_gt_u32 vcc, 2, v1
    v_cndmask_b32 v69, v70, v68, vcc
    buffer_store_dwordx4 v[64:67], v69, s[40:43], s56 offen sc1
    s_cmp_lt_u32 s35, 216
    s_cbranch_scc0 L_a_noclear_f
    s_lshl_b32 s56, s35, 10
    s_add_u32 s56, s56, {WS_F1}
    buffer_store_dwordx4 v[64:67], v68, s[40:43], s56 offen sc1
L_a_noclear_f:
    s_waitcnt vmcnt(0)
L_a_noclear:
    """)
    selectors()
    a(f"""
L_a_barA:
    s_barrier
    """)
    stamp(1)
    a(f"""
    s_cmp_eq_u32 s3, 0
    s_cbranch_scc0 L_a_notw0b
    v_mov_b32 v68, {OOB:#x}
    v_mov_b32 v69, s60
    v_cmp_eq_u32 vcc, 0, v1
    v_cndmask_b32 v68, v68, v69, vcc
    v_mov_b32 v69, 3
    buffer_store_byte v69, v68, s[64:67], 0 offen sc1
    """)
    tau_fg()
    a(f"""
L_a_notw0b:
    s_cmp_eq_u32 s3, 1
    s_cbranch_scc0 L_a_notw1
    s_cmp_lt_u32 s35, 216
    s_cbranch_scc0 L_a_notw1
    s_and_b32 s57, s35, 7
    s_mul_i32 s57, s57, 80
    v_mad_u32_u24 v64, v2, 20, s57
    v_lshrrev_b32 v6, 3, v3
    v_mul_u32_u24 v6, 1280, v6
    v_lshl_add_u32 v65, v64, 1, v6       ; x offset
    v_mul_u32_u24 v64, 3456, v64
    s_lshr_b32 s57, s35, 3
    s_lshl_b32 s57, s57, 7               ; cb*128
    v_and_b32 v66, 7, v3
    v_lshl_add_u32 v66, v66, 4, s57
    v_add_u32 v64, v64, v66
    v_cmp_gt_u32 vcc, 8, v3
    v_mov_b32 v66, s16
    v_mov_b32 v67, s17
    v_mov_b32 v68, s18
    v_mov_b32 v69, s19
    v_cndmask_b32 v66, v68, v66, vcc
    v_cndmask_b32 v67, v69, v67, vcc
    v_add_co_u32 v66, vcc, v66, v64
    v_addc_co_u32 v67, vcc, 0, v67, vcc
    s_mov_b32 s56, 6912
    s_mov_b32 s57, 0
    """)
    for k in range(5): a(f"buffer_load_dwordx2 v[{44+2*k}:{45+2*k}], v65, s[44:47], 0 offen offset:{8*k}")
    for t in range(0, 20, 2):
        a(f"global_load_dwordx4 {wreg(t)}, v[66:67], off{WF}")
        a(f"global_load_dwordx4 {wreg(t+1)}, v[66:67], off offset:3456{WF}")
        if t < 18: a(f"v_lshl_add_u64 v[66:67], v[66:67], 0, s[56:57]")
    slot_offset()
    a(f"""
    s_lshl_b32 s57, s35, 10
    s_add_u32 s57, s57, {WS_F1}
    s_waitcnt vmcnt(20)
    """)
    tile20()
    for k in range(4): a(f"v_min_u32 v{24+k}, 0xfffffffe, v{24+k}")
    a(f"""
    buffer_store_dwordx4 v[24:27], v7, s[40:43], s57 offen sc1
L_a_notw1:
    """)
    srd(36, 22, 23, 1280)
    a(f"""
    v_lshlrev_b32 v72, 5, v1
    v_mov_b32 v73, {OOB:#x}
    v_cmp_gt_u32 vcc, 40, v1
    v_cndmask_b32 v72, v73, v72, vcc
    buffer_load_dwordx4 v[44:47], v72, s[44:47], 0 offen
    buffer_load_dwordx4 v[48:51], v72, s[44:47], 0 offen offset:16
    buffer_load_dwordx4 v[52:55], v72, s[44:47], 0 offen offset:1280
    buffer_load_dwordx4 v[56:59], v72, s[44:47], 0 offen offset:1296
    buffer_load_dwordx4 v[64:67], v72, s[36:39], 0 offen
    buffer_load_dwordx4 v[68:71], v72, s[36:39], 0 offen offset:16
    """)
    srd(36, 20, 21, 1728*1280)
    a(f"""
    s_cmp_lt_u32 s61, 108
    s_cbranch_scc0 L_a_nowd
    s_lshl_b32 s56, s61, 4
    s_lshl_b32 s57, s3, 2
    s_add_u32 s56, s56, s57
    v_add_u32 v4, s56, v2
    v_mul_u32_u24 v4, 1280, v4
    v_lshl_add_u32 v4, v3, 4, v4
    """)
    for cb in range(5): a(f"buffer_load_dwordx4 {wreg(20+cb)}, v4, s[36:39], 0 offen offset:{cb*256}{WF}")
    a(f"""
L_a_nowd:
    s_waitcnt vmcnt(0)
    v_mov_b32 v74, 0
    v_mov_b32 v75, 0
    """)
    if mimic:
        for bb in range(2):
            for k in range(8):
                x = 44 + 8*bb + k; g_ = 64 + k
                a(f"""
                v_lshlrev_b32 v76, 16, v{x}
                v_lshlrev_b32 v77, 16, v{g_}
                v_and_b32 v78, 0xffff0000, v{x}
                v_and_b32 v79, 0xffff0000, v{g_}
                v_mul_f32 v76, v76, v77
                v_mul_f32 v78, v78, v79
                v_cvt_pk_bf16_f32 v76, v76, v78
                v_lshlrev_b32 v77, 16, v76
                v_and_b32 v76, 0xffff0000, v76
                v_add_f32 v{74+bb}, v{74+bb}, v77
                v_add_f32 v{74+bb}, v{74+bb}, v76
                """)
    else:
        for k in range(8):
            a(f"v_dot2c_f32_bf16 v74, v{44+k}, v{64+k}\n v_dot2c_f32_bf16 v75, v{52+k}, v{64+k}")
    allreduce("v_add_f32", 74)
    allreduce("v_add_f32", 75)
    for bb in range(2):
        z = 74 + bb
        if mimic: rbf(z)
        a(f"""
        v_mul_f32 v{z}, {f2u(-LOG2E):#x}, v{z}
        v_exp_f32 v{z}, v{z}
        v_add_f32 v{z}, 1.0, v{z}
        v_rcp_f32 v{z}, v{z}
        """)
        if mimic: rbf(z)
        a(f"v_sub_f32 v76, 1.0, v{z}")
        if mimic: rbf(76)
        a(f"v_readfirstlane_b32 s{62+bb}, v{z}\n v_readfirstlane_b32 s{50+bb}, v76")
    a(f"""
    v_lshlrev_b32 v73, 2, v1
    v_mov_b32 v72, 0x03030303
    s_mov_b32 s49, 0
L_a_all:
    buffer_load_dword v74, v73, s[64:67], 0 offen sc1
    s_add_u32 s49, s49, 1
    s_waitcnt vmcnt(0)
    v_cmp_ne_u32 vcc, v72, v74
    s_cmp_ge_u32 s49, {spin_max}
    s_cbranch_scc1 L_a_all_done
    s_cbranch_vccz L_a_all_done
    s_sleep 64
    s_branch L_a_all
L_a_all_done:
    """)
    for k in range(20): a(f"v_mov_b32 v{24+k}, 0")
    a(f"""
    s_cmp_lt_u32 s61, 108
    s_cbranch_scc0 L_a_noffn2
    s_lshr_b32 s56, s61, 2               ; cb
    s_lshl_b32 s56, s56, 13
    s_lshl_b32 s57, s31, 9
    s_add_u32 s56, s56, s57
    s_and_b32 s57, s61, 3
    s_lshl_b32 s57, s57, 6
    s_add_u32 s56, s56, s57
    s_lshl_b32 s57, s3, 4
    s_add_u32 s56, s56, s57
    s_add_u32 s56, s56, {WS_F1}          ; + (16 (fg&3) + 4v)*4
    v_and_b32 v72, 7, v3
    v_lshlrev_b32 v72, 10, v72           ; rb*1024
    v_lshrrev_b32 v73, 3, v3
    v_lshl_add_u32 v72, v73, 8, v72      ; + mat*256
    v_lshl_add_u32 v72, v2, 2, v72       ; + g*4
    v_mov_b32 v44, 0
    s_mov_b32 s49, 0
L_a_f1:
    buffer_load_dword v74, v72, s[40:43], s56 offen sc1
    s_add_u32 s49, s49, 1
    s_waitcnt vmcnt(0)
    v_cmp_eq_u32 vcc, -1, v74
    s_cmp_ge_u32 s49, {spin_max}
    s_cbranch_scc1 L_a_f1_done
    s_cbranch_vccz L_a_f1_done
    s_sleep 16
    s_branch L_a_f1
L_a_f1_done:
    v_add_f32_dpp v74, v74, v74 quad_perm:[1,0,3,2] {FULL}
    v_add_f32_dpp v74, v74, v74 quad_perm:[2,3,0,1] {FULL}
    v_add_f32_dpp v74, v74, v74 row_half_mirror {FULL}
    v_mov_b32_dpp v75, v74 row_ror:8 {FULL}
    """)
    if mimic: rbf(74); rbf(75)
    a(f"""
    v_mul_f32 v76, {f2u(-LOG2E):#x}, v74
    v_exp_f32 v76, v76
    v_add_f32 v76, 1.0, v76
    v_rcp_f32 v76, v76
    v_mul_f32 v76, v76, v74
    """)
    if mimic: rbf(76)
    a(f"""
    v_mul_f32 v76, v76, v75
    s_mov_b32 exec_lo, 0x00ff00ff
    s_mov_b32 exec_hi, 0x00ff00ff
    v_cvt_pk_bf16_f32 v44, v76, v76
    s_mov_b64 exec, -1
    """)
    perms(16, 44, 8)
    for cb in range(5): mfma(24+4*cb, 16, wreg(20+cb))
    a("s_cmp_eq_u32 s31, 0\n s_cselect_b32 s56, s50, s51")
    for k in range(20): a(f"v_mul_f32 v{24+k}, s56, v{24+k}")
    a("L_a_noffn2:")
    srd(36, 12, 13, 5242880)
    a(f"""
    s_lshl_b32 s56, s30, 7
    s_lshl_b32 s57, s3, 5
    s_add_u32 s56, s56, s57
    v_lshl_add_u32 v4, v2, 3, s56        ; row = h*128 + 32v + 8g
    v_mul_u32_u24 v4, 1280, v4
    v_lshl_add_u32 v4, v3, 4, v4
    """)
    for rg in range(8):
        a(f"s_movk_i32 s48, {rg*1280}")
        for cb in range(5):
            a(f"buffer_load_dwordx4 {wreg(rg*5+cb)}, v4, s[36:39], s48 offen offset:{cb*256}{WOF}")
            if wo_pace and (rg*5+cb) >= wo_pace-1: a(f"s_waitcnt vmcnt({wo_pace-1})")
    stamp(2)
    a(f"""
    s_lshl_b32 s56, s33, 7
    s_add_u32 s56, s56, {WS_ML}
    v_lshl_add_u32 v73, v3, 3, s56
    s_mov_b32 s49, 0
L_a_ml:
    buffer_load_dwordx2 v[74:75], v73, s[40:43], 0 offen sc1
    s_add_u32 s49, s49, 1
    s_waitcnt vmcnt(0)
    v_max_u32 v76, v74, v75
    v_cmp_eq_u32 vcc, -1, v76
    s_cmp_ge_u32 s49, {spin_max}
    s_cbranch_scc1 L_a_ml_done
    s_cbranch_vccz L_a_ml_done
    s_sleep {sleep*4}
    s_branch L_a_ml
L_a_ml_done:
    v_mov_b32 v76, v74
    """)
    for rr in (8, 4, 2, 1): a(f"v_max_f32_dpp v76, v76, v76 row_ror:{rr} {FULL}")
    a("v_sub_f32 v74, v74, v76\n v_exp_f32 v74, v74\n v_mul_f32 v75, v74, v75")
    for rr in (8, 4, 2, 1): a(f"v_add_f32_dpp v75, v75, v75 row_ror:{rr} {FULL}")
    a(f"""
    v_rcp_f32 v75, v75
    s_cmp_eq_u32 s31, 0
    s_cselect_b32 s56, s62, s63
    v_mul_f32 v74, v74, v75
    v_mul_f32 v74, s56, v74
    s_lshl_b32 s57, s32, 2
    s_add_u32 s58, s57, 1
    s_add_u32 s59, s57, 2
    s_add_u32 s54, s57, 3
    v_readlane_b32 s68, v74, s57
    v_readlane_b32 s69, v74, s58
    v_readlane_b32 s70, v74, s59
    v_readlane_b32 s71, v74, s54
    s_lshl_b32 s54, s3, 7
    v_lshl_add_u32 v6, v2, 5, s54
    v_mov_b32 v44, 0
    v_mov_b32 v45, 0
    v_mov_b32 v46, 0
    v_mov_b32 v47, 0
    s_mul_i32 s54, s3, 2560
    v_lshlrev_b32 v7, 5, v3
    v_lshl_add_u32 v7, v2, 4, v7
    v_add_u32 v7, s54, v7
    """)
    stamp(3)
    a("s_barrier")
    stamp(4)
    for w in range(4):
        a(f"ds_read_b128 v[{64+8*w}:{67+8*w}], v6 offset:{L_OP+512*w}")
        a(f"ds_read_b128 v[{68+8*w}:{71+8*w}], v6 offset:{L_OP+512*w+16}")
    for w in range(4):
        lgkm(6-2*w)
        for k in range(8):
            if w == 0: a(f"v_mul_f32 v{64+k}, s68, v{64+k}")
            else: a(f"v_fmac_f32 v{64+k}, s{68+w}, v{64+8*w+k}")
    a("s_mov_b32 exec_lo, 0x00ff00ff\n s_mov_b32 exec_hi, 0x00ff00ff")
    for r in range(4): a(f"v_cvt_pk_bf16_f32 v{44+r}, v{64+2*r}, v{65+2*r}")
    a("s_mov_b64 exec, -1")
    for rg in range(8):
        A = 16 + 4*(rg & 1)
        perms(A, 44 + (rg >> 1), 8 + 4*(rg & 1))
        for cb in range(5): mfma(24+4*cb, A, wreg(rg*5+cb))
    a("s_mov_b32 exec_hi, 0")
    for cb in range(5): a(f"ds_write_b128 v7, v[{24+4*cb}:{27+4*cb}] offset:{L_YP+cb*512}")
    a(f"""
    s_mov_b32 exec_hi, -1
    s_waitcnt lgkmcnt(0)
    s_barrier
    s_branch L_pub
    """)
    a(f"""
L_stream:
    s_sub_u32 s57, s3, 4
    s_lshl_b32 s56, s33, 21
    s_lshl_b32 s58, s32, 19
    s_add_u32 s56, s56, s58
    s_lshl_b32 s58, s57, 12
    v_lshl_add_u32 v4, v1, 4, s58
    v_mov_b32 v14, {OOB:#x}
    s_lshl_b32 s59, s34, 2
    s_add_u32 s59, s59, s57
    s_lshl_b32 s59, s59, 3
    s_add_u32 s59, s59, {WS_ML}
    v_mov_b32 v47, s59
    v_cmp_eq_u32 vcc, 0, v1
    v_cndmask_b32 v47, v14, v47, vcc
    s_waitcnt lgkmcnt(0)
    s_add_u32 s36, s6, s56
    s_addc_u32 s37, s7, 0
    s_mov_b32 s38, 0x80000
    s_mov_b32 s39, 0x20000
    s_add_u32 s44, s8, s56
    s_addc_u32 s45, s9, 0
    """)
    srd(40, 28, 29, hex(WS_SIZE))
    a(f"""
    s_mov_b32 s48, 0
    """)
    def sload(s):
        a(f"buffer_load_dwordx4 {ring(s)}, v4, s[36:39], s48 offen offset:{(s&3)*1024}{SF}")
        if (s & 3) == 3: a("s_add_u32 s48, s48, 0x4000")
    for s in range(depth):
        if thr and s >= thr: a(f"s_waitcnt vmcnt({thr-1})")
        sload(s)
    a(f"""
    v_and_b32 v32, 1, v3
    v_mov_b32 v33, 0xffff
    v_mov_b32 v34, 0xffff0000
    v_cmp_eq_u32 vcc, 1, v32
    v_cndmask_b32 v33, v33, v34, vcc
    v_lshrrev_b32 v32, 1, v3              ; c>>1
    """)
    for r in range(4):
        a(f"v_cmp_eq_u32 vcc, {r}, v32\n v_cndmask_b32 v{16+r}, 0, v33, vcc")
    Q = 80
    a(f"""
    s_mov_b32 s50, 0xaaaaaaaa
    s_mov_b32 s51, 0xaaaaaaaa
    s_mov_b32 s52, 0xcccccccc
    s_mov_b32 s53, 0xcccccccc
    v_lshlrev_b32 v46, 4, v3
    s_barrier
    """)
    stamp(1)
    a(f"""
    ds_read_b128 v[{Q}:{Q+3}], v46 offset:{L_QB}
    s_mov_b32 s49, 0
    s_waitcnt lgkmcnt(0)
L_kloop:
    """)
    Pa, Pb, Qe, Qo, T0, T1, t1, t2 = 32, 33, 36, 37, 40, 41, 42, 43
    R = [38, 39, 34, 35]
    U = [44, 45]
    ngroups = depth//16
    assert depth in (16, 32)
    for grp in range(ngroups):
        for k in range(8):
            for half, P in ((0, Pa), (1, Pb)):
                s = grp*16 + 2*k + half
                if not thr: a(f"s_waitcnt vmcnt({depth-1})")
                a(f"v_mov_b32 v{P}, 0")
                for r in range(4): a(f"v_dot2c_f32_bf16 v{P}, {ringr(s, r)}, v{Q+r}")
                if thr: a(f"s_waitcnt vmcnt({thr-1})")
                sload(s)
            Qx = Qe if k % 2 == 0 else Qo
            a(f"v_add_f32_dpp v{Qx}, v{Pa}, v{Pa} row_ror:8 row_mask:0xf bank_mask:0x3")
            a(f"v_add_f32_dpp v{Qx}, v{Pb}, v{Pb} row_ror:8 row_mask:0xf bank_mask:0xc")
            if k % 2 == 1:
                Rx = R[k >> 1]
                a(f"v_add_f32_dpp v{Rx}, v{Qe}, v{Qe} row_shl:4 row_mask:0xf bank_mask:0x5")
                a(f"v_add_f32_dpp v{Rx}, v{Qo}, v{Qo} row_shr:4 row_mask:0xf bank_mask:0xa")
            if k in (3, 7):
                Re, Ro = (R[0], R[1]) if k == 3 else (R[2], R[3])
                T = T0 if k == 3 else T1
                a(f"v_add_f32_dpp v{t1}, v{Re}, v{Re} quad_perm:[2,3,0,1] {FULL}")
                a(f"v_add_f32_dpp v{t2}, v{Ro}, v{Ro} quad_perm:[2,3,0,1] {FULL}")
                a(f"v_cndmask_b32 v{T}, v{t1}, v{t2}, s[52:53]")
        a(f"v_add_f32_dpp v{t1}, v{T0}, v{T0} quad_perm:[1,0,3,2] {FULL}")
        a(f"v_add_f32_dpp v{t2}, v{T1}, v{T1} quad_perm:[1,0,3,2] {FULL}")
        a(f"v_cndmask_b32 v{U[grp]}, v{t1}, v{t2}, s[50:51]")
    niter = 128//depth
    for k in range(8-ngroups): a(f"v_mov_b32 v{8+k}, v{8+k+ngroups}")
    for gidx in range(ngroups): a(f"v_mov_b32 v{8+8-ngroups+gidx}, v{U[gidx]}")
    a(f"""
    s_add_u32 s49, s49, 1
    s_cmp_eq_u32 s49, {niter-1}
    s_cselect_b32 s36, s44, s36
    s_cselect_b32 s37, s45, s37
    s_cselect_b32 s48, 0, s48
    s_cmp_lt_u32 s49, {niter}
    s_cbranch_scc1 L_kloop
    """)
    stamp(2)
    c1 = f2u(128**-0.5*LOG2E)
    a(f"""
    v_max3_f32 v32, v8, v9, v10
    v_max3_f32 v32, v32, v11, v12
    v_max3_f32 v32, v32, v13, v14
    v_max_f32 v32, v32, v15
    """)
    allreduce("v_max_f32", 32)
    a(f"v_mov_b32 v33, {c1:#x}\n v_mul_f32 v32, v33, v32")
    for k in range(8): a(f"v_fma_f32 v{8+k}, v{8+k}, v33, -v32")
    for k in range(8): a(f"v_exp_f32 v{8+k}, v{8+k}")
    a(f"""
    v_add_f32 v34, v8, v9
    v_add_f32 v35, v10, v11
    v_add_f32 v36, v12, v13
    v_add_f32 v37, v14, v15
    v_add_f32 v34, v34, v35
    v_add_f32 v36, v36, v37
    v_add_f32 v34, v34, v36
    """)
    allreduce("v_add_f32", 34)
    for k in range(8): a(f"v_cvt_pk_bf16_f32 v{8+k}, v{8+k}, v{8+k}")
    a(f"""
    v_min_u32 v36, 0xfffffffe, v32
    v_min_u32 v37, 0xfffffffe, v34
    buffer_store_dwordx2 v[36:37], v47, s[40:43], 0 offen sc1
    v_mov_b32 v28, 0
    v_mov_b32 v29, 0
    v_mov_b32 v30, 0
    v_mov_b32 v31, 0
    s_lshl_b32 s58, s57, 9
    v_lshlrev_b32 v46, 5, v3             ; c*32
    v_lshl_add_u32 v46, v2, 4, v46       ; + lg*16
    v_add_u32 v46, s58, v46
    s_mov_b32 s49, 0
L_vloop:
    """)
    for s in range(depth):
        t = s & 15
        c = 4*rev2(t & 3) + rev2(t >> 2)
        P = 8 + (s >> 4)
        A = 20 + 4*(s & 1)
        a(f"s_waitcnt vmcnt({depth-1})")
        for r in range(4): a(f"v_and_b32_dpp v{A+r}, v{P}, v{16+r} row_newbcast:{c} {FULL}")
        mfma(28, A, ring(s))
        if vthr: a(f"s_waitcnt vmcnt({vthr-1})")
        sload(s)
    for k in range(8-ngroups): a(f"v_mov_b32 v{8+k}, v{8+k+ngroups}")
    a(f"""
    s_add_u32 s49, s49, 1
    s_cmp_lt_u32 s49, {niter}
    s_cbranch_scc1 L_vloop
    """)
    stamp(3)
    a(f"""
    s_mov_b32 exec_hi, 0
    ds_write_b128 v46, v[28:31] offset:{L_OP}
    s_mov_b32 exec_hi, -1
    s_waitcnt lgkmcnt(0)
    s_barrier
    """)
    stamp(4)
    a("s_barrier\nL_pub:")
    stamp(5)
    a(f"""
    s_cmp_ge_u32 s3, 3
    s_cbranch_scc1 L_nopub
    v_lshlrev_b32 v46, 4, v0
    """)
    for w in range(4): a(f"ds_read_b128 v[{48+4*w}:{51+4*w}], v46 offset:{L_YP+2560*w}")
    a(f"""
    s_mul_i32 s54, s34, 2560
    v_add_u32 v47, s54, v46
    v_mov_b32 v45, {OOB:#x}
    v_cmp_gt_u32 vcc, 160, v0
    v_cndmask_b32 v47, v45, v47, vcc
    s_waitcnt lgkmcnt(0)
    """)
    for k in range(4): a(f"v_add_f32 v{48+k}, v{48+k}, v{52+k}\n v_add_f32 v{56+k}, v{56+k}, v{60+k}")
    for k in range(4): a(f"v_add_f32 v{48+k}, v{48+k}, v{56+k}")
    for k in range(4): a(f"v_min_u32 v{48+k}, 0xfffffffe, v{48+k}")
    a(f"""
    buffer_store_dwordx4 v[48:51], v47, s[40:43], 0 offen sc1
L_nopub:
    """)
    stamp(6)
    a(f"""
    s_cmp_ge_u32 s2, 80
    s_cbranch_scc1 L_fin
    s_cmp_ge_u32 s2, 40
    s_cselect_b32 s54, 1, 0              ; batch
    s_mul_i32 s55, s54, 40
    s_sub_u32 s55, s2, s55
    v_lshrrev_b32 v44, 2, v0             ; i
    v_and_b32 v45, 3, v0                 ; cq
    s_lshl_b32 s56, s55, 6
    v_lshl_add_u32 v45, v45, 4, s56
    s_mul_i32 s56, s54, {128*2560}
    v_mul_u32_u24 v46, 2560, v44
    v_add3_u32 v46, v46, v45, s56        ; Y address
    s_mov_b32 s49, 0
L_g:
    buffer_load_dwordx4 v[48:51], v46, s[40:43], 0 offen sc1
    s_add_u32 s49, s49, 1
    s_waitcnt vmcnt(0)
    v_max_u32 v56, v48, v49
    v_max3_u32 v56, v56, v50, v51
    v_cmp_eq_u32 vcc, -1, v56
    s_cmp_ge_u32 s49, {spin_max}
    s_cbranch_scc1 L_g_done
    s_cbranch_vccnz L_g
L_g_done:
    """)
    for rr in (8, 4):
        for k in range(4): a(f"v_add_f32_dpp v{48+k}, v{48+k}, v{48+k} row_ror:{rr} {FULL}")
    a(f"""
    v_lshlrev_b32 v44, 9, v3             ; cq*4*128
    s_lshl_b32 s56, s3, 4
    v_lshl_add_u32 v45, v2, 2, s56       ; (wave*4+row)*4
    v_add_u32 v44, v44, v45
    s_mov_b32 exec_lo, 0x000f000f
    s_mov_b32 exec_hi, 0x000f000f
    """)
    for k in range(4): a(f"ds_write_b32 v44, v{48+k} offset:{L_RP+128*k}")
    a(f"""
    s_mov_b64 exec, -1
    s_waitcnt lgkmcnt(0)
    s_barrier
    s_cmp_eq_u32 s3, 0
    s_cbranch_scc0 L_fin
    v_lshlrev_b32 v44, 5, v1
    ds_read_b128 v[48:51], v44 offset:{L_RP}
    ds_read_b128 v[52:55], v44 offset:{L_RP+16}
    """)
    srd(64, 24, 25, 2560)
    a(f"""
    s_mul_i32 s56, s54, 1280
    s_lshl_b32 s55, s55, 5
    s_add_u32 s56, s56, s55
    v_lshrrev_b32 v45, 2, v1
    v_lshl_add_u32 v45, v45, 1, s56
    v_and_b32 v46, 3, v1
    v_mov_b32 v43, {OOB:#x}
    v_cmp_eq_u32 vcc, 0, v46
    v_cndmask_b32 v45, v43, v45, vcc
    s_waitcnt lgkmcnt(0)
    v_add_f32 v48, v48, v49
    v_add_f32 v50, v50, v51
    v_add_f32 v52, v52, v53
    v_add_f32 v54, v54, v55
    v_add_f32 v48, v48, v50
    v_add_f32 v52, v52, v54
    v_add_f32 v48, v48, v52
    v_add_f32_dpp v48, v48, v48 quad_perm:[1,0,3,2] {FULL}
    v_add_f32_dpp v48, v48, v48 quad_perm:[2,3,0,1] {FULL}
    v_cvt_pk_bf16_f32 v48, v48, v48
    buffer_store_short v48, v45, s[64:67], 0 offen
L_fin:
    """)
    if stamps:
        a(f"""
        s_memrealtime s[86:87]
        s_getreg_b32 s54, hwreg(HW_REG_XCC_ID)
        s_waitcnt lgkmcnt(0)
        s_lshl_b32 s55, s2, 3
        s_add_u32 s55, s55, s3
        s_lshl_b32 s55, s55, 6
        s_add_u32 s55, s55, {WS_STAMP}
        s_mov_b32 s40, s28
        s_mov_b32 s41, s29
        s_mov_b32 s42, 0x400000
        s_mov_b32 s43, 0x20000
        v_mov_b32 v48, s72
        v_mov_b32 v49, s74
        v_mov_b32 v50, s76
        v_mov_b32 v51, s78
        v_mov_b32 v52, s80
        v_mov_b32 v53, s82
        v_mov_b32 v54, s84
        v_mov_b32 v55, s86
        v_mov_b32 v56, s54
        v_mov_b32 v45, s55
        v_mov_b32 v43, {OOB:#x}
        v_cmp_eq_u32 vcc, 0, v1
        v_cndmask_b32 v45, v43, v45, vcc
        buffer_store_dwordx4 v[48:51], v45, s[40:43], 0 offen
        buffer_store_dwordx4 v[52:55], v45, s[40:43], 0 offen offset:16
        v_mov_b32 v57, s88
        v_mov_b32 v58, s90
        v_mov_b32 v59, s92
        buffer_store_dwordx4 v[56:59], v45, s[40:43], 0 offen offset:32
        """)
    a("L_end:\n s_endpgm")
    text, n = hz.fix(a.text())
    return wrap(text, 256, 512, LDS_BYTES, vgpr=256, sgpr=100), n

if __name__ == "__main__":
    from build import build
    import json
    names = []
    for spec in sys.argv[1:]:
        kw = {}
        name, _, rest = spec.partition(":")
        for p in rest.split(","):
            if not p: continue
            k, v = p.split("=")
            kw[k] = v if k in ("sflag", "wflag", "woflag") else int(v)
        for k in ("sflag", "wflag", "woflag"):
            if kw.get(k) == "none": kw[k] = ""
            if k in kw: kw[k] = kw[k].replace("+", " ")
        t, n = gen(**kw)
        open(f"work/{name}.s", "w").write(t)
        build(f"work/{name}.s")
        print(name, "nops inserted:", n, "lines:", t.count("\n"))
        names.append(name)
    print(json.dumps(["work/bench.py", "cdna_kernels/cdna_launch.py", "cdna_kernels/cdna_unwritten_srd_check.py", "gated_mix__mha_block_cached__swiglu_ffn__decode_np.py"] + sum([[f"work/{n}.co", f"work/{n}.s"] for n in names], [])))
```

```python
import sys, struct
sys.path.insert(0, "work")
from asmlib import *
import hz

SENT = 0xFFFFFFFF
OOB = 0x7FFF0000
WS_Y = 0
WS_ML = 0xA0000
WS_Q = 0xA2000
WS_F1 = 0xE2000
WS_O = 0x118000
WS_SIZE = 0x198000
WS_STAMP = 0x200000
L_QB, L_G, L_OP, L_YP, L_RP = 0, 1024, 2048, 4096, 0
L_ST = L_YP
LDS_BYTES = 16384
LOG2E = 1.4426950408889634
def f2u(f): return struct.unpack("<I", struct.pack("<f", f))[0]
def rev2(x): return ((x & 1) << 1) | ((x >> 1) & 1)
FULL = "row_mask:0xf bank_mask:0xf"

def gen(depth=32, sflag="nt", wflag="nt", woflag=None, stamps=0, spin_max=1 << 16, mimic=1, wo_pace=0, sleep=4, thr=6, vthr=0, wo_n=40, ml_delay=0, ml_sleep=16, hmap=0, ra=8, rx=1, ru=12, x_noflag=0, x_noml=0, x_noffn=0, a0=1, qsleep=0, opt_h=0, gmask=1, tail2=1, late=1, vflag=None):
    a = Asm()
    SF = (" " + sflag) if sflag else ""
    WF = (" " + wflag) if wflag else ""
    WOF = WF if woflag is None else ((" " + woflag) if woflag else "")
    RING = 256 - depth*4
    def ring(s): return f"v[{RING+4*s}:{RING+4*s+3}]"
    def ringr(s, r): return f"v{RING+4*s+r}"
    W0 = 96
    def wreg(t): return f"v[{W0+4*t}:{W0+4*t+3}]"
    def stamp(k):
        if stamps: a(f"s_memrealtime s[{72+2*k}:{73+2*k}]")
    def xstamp(k):
        if stamps: a(f"s_memrealtime s[{88+2*k}:{89+2*k}]")
    SR = [63]
    def ts(idx):
        if stamps: a(f"s_memrealtime s[96:97]\n s_waitcnt lgkmcnt(0)\n v_writelane_b32 v{SR[0]}, s96, {idx}")
    def ts_dyn(base):
        if stamps: a(f"s_memrealtime s[96:97]\n s_add_u32 s94, s49, {base}\n s_waitcnt lgkmcnt(0)\n s_mov_b32 m0, s94\n v_writelane_b32 v{SR[0]}, s96, m0")
    def lgkm(n): a(f"s_waitcnt lgkmcnt({0 if stamps else n})")
    def allreduce(op, v):
        for rr in (8, 4, 2, 1): a(f"{op}_dpp v{v}, v{v}, v{v} row_ror:{rr} {FULL}")
        a(f"v_readlane_b32 s54, v{v}, 0\n v_readlane_b32 s55, v{v}, 16\n v_readlane_b32 s56, v{v}, 32\n v_readlane_b32 s58, v{v}, 48")
        a(f"v_mov_b32 v{v}, s54\n {op} v{v}, s55, v{v}\n {op} v{v}, s56, v{v}\n {op} v{v}, s58, v{v}")
    def rbf(v):
        a(f"v_cvt_pk_bf16_f32 v{v}, v{v}, v{v}\n v_lshlrev_b32 v{v}, 16, v{v}")
    def srd(base, lo, hi, size):
        a(f"s_mov_b32 s{base}, s{lo}\n s_mov_b32 s{base+1}, s{hi}\n s_mov_b32 s{base+2}, {size}\n s_mov_b32 s{base+3}, 0x20000")
    def mfma(d, A, B, C=None):
        a(f"v_mfma_f32_16x16x32_bf16 v[{d}:{d+3}], v[{A}:{A+3}], {B}, " + (C if C is not None else f"v[{d}:{d+3}]"))
    def perms(A, X, sel):
        for r in range(4): a(f"v_perm_b32 v{A+r}, v{X}, v{X}, v{sel+r}")
    a(f"""
    s_cmp_ge_u32 s2, 256
    s_cbranch_scc1 L_end
    s_load_dwordx16 s[4:19], s[0:1], 0
    s_load_dwordx8 s[20:27], s[0:1], 64
    s_load_dwordx2 s[28:29], s[0:1], 96
    """)
    stamp(0)
    if stamps: a("v_mov_b32 v63, 0")
    a(f"""
    v_lshrrev_b32 v2, 6, v0
    v_and_b32 v1, 63, v0
    s_and_b32 s54, s2, 7             ; x
    v_readfirstlane_b32 s3, v2       ; wave
    s_lshr_b32 s55, s2, 3            ; j
    s_and_b32 s30, s55, 3
    """)
    if hmap == 0: a("s_lshl_b32 s56, s54, 2\n s_add_u32 s30, s30, s56          ; h = 4x + (j&3)")
    else: a("s_lshl_b32 s30, s30, 3\n s_add_u32 s30, s30, s54          ; h = x + 8 (j&3)")
    a(f"""
    s_bfe_u32 s31, s55, 0x10002      ; b = (j>>2)&1
    s_lshr_b32 s32, s55, 3           ; split
    s_lshl_b32 s33, s31, 5
    s_add_u32 s33, s33, s30          ; bh
    s_lshl_b32 s34, s33, 2
    s_add_u32 s34, s34, s32
    v_and_b32 v3, 15, v1             ; c
    v_lshrrev_b32 v2, 4, v1          ; g
    s_cmp_ge_u32 s3, 4
    s_cbranch_scc1 L_stream
    """)
    def selectors():
        a(f"""
        v_and_b32 v70, 1, v3
        v_mov_b32 v71, 0x0c0c0100
        v_mov_b32 v72, 0x01000c0c
        v_mov_b32 v73, 0x0c0c0302
        v_mov_b32 v74, 0x03020c0c
        v_cmp_eq_u32 vcc, 1, v70
        v_cndmask_b32 v71, v71, v72, vcc
        v_cndmask_b32 v73, v73, v74, vcc
        v_mov_b32 v75, 0x0c0c0c0c
        v_bfe_u32 v70, v3, 1, 2
        """)
        for r in range(4):
            a(f"v_cmp_eq_u32 vcc, {r}, v70\n v_cndmask_b32 v{8+r}, v75, v71, vcc\n v_cndmask_b32 v{12+r}, v75, v73, vcc")
    def tile20(extra=0):
        for t in range(20):
            A = 16 + 4*(t & 1)
            perms(A, 44 + (t >> 1), 8 + 4*(t & 1))
            a(f"s_waitcnt vmcnt({19-t+extra})")
            mfma(24, A, wreg(t), "0" if t == 0 else None)
    def tau_fg():
        a(f"""
        s_and_b32 s54, s2, 7                 ; x
        s_lshr_b32 s55, s2, 3                ; j
        s_lshr_b32 s56, s54, 1               ; x>>1
        s_mul_i32 s57, s56, 22
        s_add_u32 s57, s57, 128
        s_add_u32 s57, s57, s55
        s_cmp_ge_u32 s55, 22
        s_cselect_b32 s57, 999, s57          ; odd x
        s_lshl_b32 s35, s56, 5
        s_add_u32 s35, s35, s55              ; even x
        s_bitcmp1_b32 s54, 0
        s_cselect_b32 s35, s57, s35          ; tau: gate/up tile (>= 216: none)
        s_lshl_b32 s57, s32, 2
        s_and_b32 s59, s55, 3
        s_add_u32 s57, s57, s59              ; jb
        s_mul_i32 s59, s56, 11
        s_add_u32 s59, s59, s57
        s_add_u32 s59, s59, 59               ; 64 + 11*(x>>1) + jb - 5
        s_cmp_lt_u32 s57, 5
        s_cselect_b32 s59, 999, s59
        s_lshl_b32 s61, s56, 4
        s_add_u32 s61, s61, s57
        s_bitcmp1_b32 s54, 0
        s_cselect_b32 s61, s59, s61          ; fg: w_down row group (>= 108: none)
        """)
        if x_noffn: a("s_movk_i32 s35, 999\n s_movk_i32 s61, 999")
        a(f"""
        """)
    def gates():
        srd(36, 22, 23, 1280)
        a(f"""
    v_lshlrev_b32 v72, 5, v1
    v_mov_b32 v73, {OOB:#x}
    v_cmp_gt_u32 vcc, 40, v1
    v_cndmask_b32 v72, v73, v72, vcc
    buffer_load_dwordx4 v[44:47], v72, s[44:47], 0 offen
    buffer_load_dwordx4 v[48:51], v72, s[44:47], 0 offen offset:16
    buffer_load_dwordx4 v[52:55], v72, s[44:47], 0 offen offset:1280
    buffer_load_dwordx4 v[56:59], v72, s[44:47], 0 offen offset:1296
    buffer_load_dwordx4 v[64:67], v72, s[36:39], 0 offen
    buffer_load_dwordx4 v[68:71], v72, s[36:39], 0 offen offset:16
    """)
        a(f"""
    s_waitcnt vmcnt(0)
    v_mov_b32 v74, 0
    v_mov_b32 v75, 0
    """)
        if mimic:
            for bb in range(2):
                for k in range(8):
                    x = 44 + 8*bb + k; g_ = 64 + k
                    a(f"""
                v_lshlrev_b32 v76, 16, v{x}
                v_lshlrev_b32 v77, 16, v{g_}
                v_and_b32 v78, 0xffff0000, v{x}
                v_and_b32 v79, 0xffff0000, v{g_}
                v_mul_f32 v76, v76, v77
                v_mul_f32 v78, v78, v79
                v_cvt_pk_bf16_f32 v76, v76, v78
                v_lshlrev_b32 v77, 16, v76
                v_and_b32 v76, 0xffff0000, v76
                v_add_f32 v{74+bb}, v{74+bb}, v77
                v_add_f32 v{74+bb}, v{74+bb}, v76
                """)
        else:
            for k in range(8):
                a(f"v_dot2c_f32_bf16 v74, v{44+k}, v{64+k}\n v_dot2c_f32_bf16 v75, v{52+k}, v{64+k}")
        allreduce("v_add_f32", 74)
        allreduce("v_add_f32", 75)
        for bb in range(2):
            z = 74 + bb
            if mimic: rbf(z)
            a(f"""
        v_mul_f32 v{z}, {f2u(-LOG2E):#x}, v{z}
        v_exp_f32 v{z}, v{z}
        v_add_f32 v{z}, 1.0, v{z}
        v_rcp_f32 v{z}, v{z}
        """)
            if mimic: rbf(z)
            a(f"v_sub_f32 v{76+bb}, 1.0, v{z}")
            if mimic: rbf(76+bb)
        a(f"""
        v_mov_b32 v72, 0
        ds_write_b128 v72, v[74:77] offset:{L_G}
        s_waitcnt lgkmcnt(0)
        """)
    def slot_offset():
        a(f"""
        v_lshrrev_b32 v7, 1, v2
        v_lshlrev_b32 v7, 9, v7              ; bb*512
        v_and_b32 v5, 1, v2
        v_lshl_add_u32 v7, v5, 4, v7
        v_lshl_add_u32 v7, v3, 5, v7
        """)
    a(f"""
    s_lshl_b32 s57, s31, 2
    s_add_u32 s57, s57, s32
    s_lshl_b32 s60, s30, 3
    s_add_u32 s60, s60, s57
    s_cmp_eq_u32 s3, 0
    s_cbranch_scc0 L_a_notw0
    s_mul_i32 s57, s57, 80
    v_mad_u32_u24 v4, v2, 20, s57
    v_lshrrev_b32 v6, 3, v3
    v_mul_u32_u24 v6, 1280, v6           ; bb*1280
    v_lshl_add_u32 v5, v4, 1, v6         ; x offset
    s_lshl_b32 s57, s30, 8
    v_lshlrev_b32 v4, 13, v4
    v_lshl_add_u32 v7, v3, 4, s57
    v_add_u32 v4, v4, v7
    s_mov_b32 s48, 0
    s_movk_i32 s49, 0x2000
    """)
    a("v_mov_b32 v55, v5")
    slot_offset()
    a(f"""
    v_mov_b32 v5, v55
    s_lshl_b32 s58, s60, 10
    s_add_u32 s58, s58, {WS_Q}
    s_lshl_b32 s56, s30, 13
    s_lshl_b32 s57, s31, 9
    s_add_u32 s56, s56, s57
    s_add_u32 s56, s56, {WS_Q}
    s_add_u32 s57, s56, 4096
    v_lshlrev_b32 v6, 3, v1
    s_waitcnt lgkmcnt(0)
    """)
    srd(40, 28, 29, hex(WS_SIZE))
    a(f"""
    buffer_load_dwordx4 v[28:31], v7, s[40:43], s58 offen sc1
    """)
    for rb in range(8):
        a(f"buffer_load_dwordx2 v[{80+2*rb}:{81+2*rb}], v6, s[40:43], {'s56' if rb < 4 else 's57'} offen offset:{(rb & 3)*1024} sc1")
    srd(44, 4, 5, 2560)
    srd(36, 10, 11, 5242880)
    for k in range(5): a(f"buffer_load_dwordx2 v[{44+2*k}:{45+2*k}], v5, s[44:47], 0 offen offset:{8*k}")
    for t in range(20):
        a(f"buffer_load_dwordx4 {wreg(t)}, v4, s[36:39], s48 offen{WF}")
        if t < 19: a("s_add_u32 s48, s48, s49")
    if a0: a("s_barrier")
    selectors()
    srd(64, 26, 27, 256)
    a(f"""
    s_lshl_b32 s59, s30, 2
    v_mov_b32 v54, s59
    s_mov_b32 s69, 0x10001
    s_waitcnt vmcnt(20)
    """)
    tile20()
    xstamp(0)
    a("v_lshlrev_b32 v5, 2, v1")
    for k in range(4): a(f"v_not_b32 v{28+k}, v{28+k}")
    for k in range(4): a(f"v_bfi_b32 v{24+k}, 1, v{28+k}, v{24+k}")
    a(f"""
    buffer_store_dwordx4 v[24:27], v7, s[40:43], s58 offen sc1
    s_mov_b32 s49, 0
L_a_qp:
    """)
    for rb in range(8):
        a(f"buffer_load_dwordx2 v[{64+2*rb}:{65+2*rb}], v6, s[40:43], {'s56' if rb < 4 else 's57'} offen offset:{(rb & 3)*1024} sc1")
    a("s_add_u32 s49, s49, 1\n s_waitcnt vmcnt(0)")
    for k in range(16): a(f"v_xor_b32 v{28 if k == 0 else 29}, v{64+k}, v{80+k}" + ("" if k == 0 else "\n v_and_b32 v28, v28, v29"))
    a(f"""
    v_and_b32 v28, 1, v28
    v_cmp_eq_u32 vcc, 0, v28
    s_cmp_ge_u32 s49, {spin_max}
    s_cbranch_scc1 L_a_q_got
    s_cbranch_vccz L_a_q_got
    {"s_sleep %d" % qsleep if qsleep else ""}
    s_cmp_lt_u32 s49, 6
    s_cbranch_scc1 L_a_qp
    s_cmp_eq_u32 s49, 6
    s_cbranch_scc0 L_a_q_noset
    v_mov_b32 v28, {OOB:#x}
    v_cmp_eq_u32 vcc, 0, v1
    v_cndmask_b32 v28, v28, v54, vcc
    v_mov_b32 v29, 1
    buffer_atomic_add v29, v28, s[64:67], 0 offen sc1
    s_mov_b32 s69, 0x10000
L_a_q_noset:
    buffer_load_dword v28, v54, s[64:67], 0 offen sc1
    s_waitcnt vmcnt(0)
    v_and_b32 v28, 0xffff, v28
    s_nop 0
    v_readfirstlane_b32 s55, v28
    s_cmp_ge_u32 s55, 8
    s_cbranch_scc1 L_a_q_flagged
    s_sleep 8
    s_branch L_a_qp
L_a_q_flagged:
    """)
    for rb in range(8):
        a(f"buffer_load_dwordx2 v[{64+2*rb}:{65+2*rb}], v6, s[40:43], {'s56' if rb < 4 else 's57'} offen offset:{(rb & 3)*1024} sc1")
    a("s_waitcnt vmcnt(0)\nL_a_q_got:")
    xstamp(1)
    if stamps: a("s_mov_b32 s92, s49")
    for k in range(16): a(f"v_and_b32 v{64+k}, -2, v{64+k}")
    for k in range(2):
        a(f"""
        v_add_f32 v{64+k}, v{64+k}, v{66+k}
        v_add_f32 v{68+k}, v{68+k}, v{70+k}
        v_add_f32 v{72+k}, v{72+k}, v{74+k}
        v_add_f32 v{76+k}, v{76+k}, v{78+k}
        v_add_f32 v{64+k}, v{64+k}, v{68+k}
        v_add_f32 v{72+k}, v{72+k}, v{76+k}
        v_add_f32 v{64+k}, v{64+k}, v{72+k}
        """)
    a(f"""
    v_cvt_pk_bf16_f32 v64, v64, v65
    ds_write_b32 v5, v64 offset:{L_QB}
    s_waitcnt lgkmcnt(0)
    s_branch L_a_barA
L_a_notw0:
    """)
    if a0: a("s_barrier")
    a(f"""
    s_waitcnt lgkmcnt(0)
    """)
    srd(44, 4, 5, 2560)
    srd(40, 28, 29, hex(WS_SIZE))
    srd(64, 26, 27, 256)
    tau_fg()
    a(f"""
    s_cmp_eq_u32 s3, 2
    s_cbranch_scc0 L_a_noclear
    v_mov_b32 v64, {SENT:#x}
    v_mov_b32 v65, v64
    v_mov_b32 v66, v64
    v_mov_b32 v67, v64
    v_lshlrev_b32 v68, 4, v1
    s_mul_i32 s56, s34, 2560
    v_mov_b32 v70, {OOB:#x}
    v_cmp_gt_u32 vcc, 32, v1
    v_cndmask_b32 v69, v70, v68, vcc
    buffer_store_dwordx4 v[64:67], v68, s[40:43], s56 offen sc1
    buffer_store_dwordx4 v[64:67], v68, s[40:43], s56 offen offset:1024 sc1
    buffer_store_dwordx4 v[64:67], v69, s[40:43], s56 offen offset:2048 sc1
    """)
    if opt_h: a(f"""
    s_lshl_b32 s56, s34, 11
    s_add_u32 s56, s56, {WS_O}
    buffer_store_dwordx4 v[64:67], v68, s[40:43], s56 offen sc1
    buffer_store_dwordx4 v[64:67], v68, s[40:43], s56 offen offset:1024 sc1
    """)
    a(f"""
    s_lshl_b32 s56, s34, 5
    s_add_u32 s56, s56, {WS_ML}
    v_cmp_gt_u32 vcc, 2, v1
    v_cndmask_b32 v69, v70, v68, vcc
    buffer_store_dwordx4 v[64:67], v69, s[40:43], s56 offen sc1
    s_cmp_lt_u32 s35, 216
    s_cbranch_scc0 L_a_noclear_f
    s_lshl_b32 s56, s35, 10
    s_add_u32 s56, s56, {WS_F1}
    buffer_store_dwordx4 v[64:67], v68, s[40:43], s56 offen sc1
L_a_noclear_f:
    s_waitcnt vmcnt(0)
L_a_noclear:
    s_cmp_eq_u32 s3, 3
    s_cbranch_scc0 L_a_nogate
    """)
    gates()
    a("L_a_nogate:")
    selectors()
    a(f"""
L_a_barA:
    s_barrier
    """)
    stamp(1)
    a(f"""
    s_cmp_eq_u32 s3, 0
    s_cbranch_scc0 L_a_notw0b
    v_mov_b32 v68, {OOB:#x}
    v_cmp_eq_u32 vcc, 0, v1
    v_cndmask_b32 v68, v68, v54, vcc
    v_mov_b32 v69, s69
    {"s_nop 0" if x_noflag else "buffer_atomic_add v69, v68, s[64:67], 0 offen sc1"}
    """)
    tau_fg()
    a(f"""
L_a_notw0b:
    s_cmp_eq_u32 s3, 1
    s_cbranch_scc0 L_a_notw1
    s_cmp_lt_u32 s35, 216
    s_cbranch_scc0 L_a_notw1
    s_and_b32 s57, s35, 7
    s_mul_i32 s57, s57, 80
    v_mad_u32_u24 v64, v2, 20, s57
    v_lshrrev_b32 v6, 3, v3
    v_mul_u32_u24 v6, 1280, v6
    v_lshl_add_u32 v65, v64, 1, v6       ; x offset
    v_mul_u32_u24 v64, 3456, v64
    s_lshr_b32 s57, s35, 3
    s_lshl_b32 s57, s57, 7               ; cb*128
    v_and_b32 v66, 7, v3
    v_lshl_add_u32 v66, v66, 4, s57
    v_add_u32 v64, v64, v66
    v_cmp_gt_u32 vcc, 8, v3
    v_mov_b32 v66, s16
    v_mov_b32 v67, s17
    v_mov_b32 v68, s18
    v_mov_b32 v69, s19
    v_cndmask_b32 v66, v68, v66, vcc
    v_cndmask_b32 v67, v69, v67, vcc
    v_add_co_u32 v66, vcc, v66, v64
    v_addc_co_u32 v67, vcc, 0, v67, vcc
    s_mov_b32 s56, 6912
    s_mov_b32 s57, 0
    """)
    for k in range(5): a(f"buffer_load_dwordx2 v[{44+2*k}:{45+2*k}], v65, s[44:47], 0 offen offset:{8*k}")
    for t in range(0, 20, 2):
        a(f"global_load_dwordx4 {wreg(t)}, v[66:67], off{WF}")
        a(f"global_load_dwordx4 {wreg(t+1)}, v[66:67], off offset:3456{WF}")
        if t < 18: a(f"v_lshl_add_u64 v[66:67], v[66:67], 0, s[56:57]")
    slot_offset()
    a(f"""
    s_lshl_b32 s57, s35, 10
    s_add_u32 s57, s57, {WS_F1}
    s_waitcnt vmcnt(20)
    """)
    tile20()
    for k in range(4): a(f"v_min_u32 v{24+k}, 0xfffffffe, v{24+k}")
    a(f"""
    buffer_store_dwordx4 v[24:27], v7, s[40:43], s57 offen sc1
L_a_notw1:
    """)
    ts(1)
    a(f"""
    v_mov_b32 v72, 0
    ds_read_b128 v[64:67], v72 offset:{L_G}
    s_waitcnt lgkmcnt(0)
    v_readfirstlane_b32 s62, v64
    v_readfirstlane_b32 s63, v65
    v_readfirstlane_b32 s50, v66
    v_readfirstlane_b32 s51, v67
    """)
    if opt_h:
        srd(36, 12, 13, 5242880)
        a(f"""
    s_lshl_b32 s56, s30, 7
    s_lshl_b32 s57, s32, 5
    s_add_u32 s56, s56, s57
    s_lshl_b32 s57, s3, 3
    s_add_u32 s56, s56, s57
    v_lshl_add_u32 v4, v2, 1, s56        ; row
    v_mul_u32_u24 v4, 1280, v4
    v_lshl_add_u32 v4, v3, 4, v4
    s_movk_i32 s48, 1280
    """)
        for rg in range(2):
            for cb in range(5):
                a(f"buffer_load_dwordx4 {wreg(rg*5+cb)}, v4, s[36:39], {'0' if rg == 0 else 's48'} offen offset:{cb*256}{WOF}")
    else:
        srd(36, 12, 13, 5242880)
        a(f"""
    s_lshl_b32 s56, s30, 7
    s_lshl_b32 s57, s3, 5
    s_add_u32 s56, s56, s57
    v_lshl_add_u32 v4, v2, 3, s56        ; row = h*128 + 32v + 8g
    v_mul_u32_u24 v4, 1280, v4
    v_lshl_add_u32 v4, v3, 4, v4
    """)
        for rg in range(8):
            a(f"s_movk_i32 s48, {rg*1280}")
            for cb in range(5):
                if rg*5+cb >= wo_n: continue
                a(f"buffer_load_dwordx4 {wreg(rg*5+cb)}, v4, s[36:39], s48 offen offset:{cb*256}{WOF}")
                if wo_pace and (rg*5+cb) >= wo_pace-1: a(f"s_waitcnt vmcnt({wo_pace-1})")
    stamp(2)
    srd(36, 20, 21, 1728*1280)
    a(f"""
    s_cmp_lt_u32 s61, 108
    s_cbranch_scc0 L_a_nowd
    s_lshl_b32 s56, s61, 4
    s_lshl_b32 s57, s3, 2
    s_add_u32 s56, s56, s57
    v_add_u32 v4, s56, v2
    v_mul_u32_u24 v4, 1280, v4
    v_lshl_add_u32 v4, v3, 4, v4
    """)
    for cb in range(5): a(f"buffer_load_dwordx4 v[{64+4*cb}:{67+4*cb}], v4, s[36:39], 0 offen offset:{cb*256}{WF}")
    a("L_a_nowd:")
    ts(2)
    if x_noflag: a("s_branch L_a_all_done")
    a(f"""
    v_and_b32 v87, 31, v1
    v_lshlrev_b32 v87, 2, v87
    v_mov_b32 v86, 0x80000
    s_mov_b32 s49, 0
L_a_all:
    buffer_load_dword v88, v87, s[64:67], 0 offen sc1
    s_add_u32 s49, s49, 1
    s_waitcnt vmcnt(0)
    v_cmp_gt_u32 vcc, v86, v88
    s_cmp_ge_u32 s49, {spin_max}
    s_cbranch_scc1 L_a_all_done
    s_cbranch_vccz L_a_all_done
    s_sleep 64
    s_branch L_a_all
L_a_all_done:
    """)
    if stamps: a("s_mov_b32 s95, s49")
    ts(3)
    if stamps: a("v_writelane_b32 v63, s95, 10")
    for k in range(20): a(f"v_mov_b32 v{24+k}, 0")
    a(f"""
    s_cmp_lt_u32 s61, 108
    s_cbranch_scc0 L_a_noffn2
    s_lshr_b32 s56, s61, 2               ; cb
    s_lshl_b32 s56, s56, 13
    s_lshl_b32 s57, s31, 9
    s_add_u32 s56, s56, s57
    s_and_b32 s57, s61, 3
    s_lshl_b32 s57, s57, 6
    s_add_u32 s56, s56, s57
    s_lshl_b32 s57, s3, 4
    s_add_u32 s56, s56, s57
    s_add_u32 s56, s56, {WS_F1}          ; + (16 (fg&3) + 4v)*4
    v_and_b32 v86, 7, v3
    v_lshlrev_b32 v86, 10, v86           ; rb*1024
    v_lshrrev_b32 v87, 3, v3
    v_lshl_add_u32 v86, v87, 8, v86      ; + mat*256
    v_lshl_add_u32 v86, v2, 2, v86       ; + g*4
    v_mov_b32 v44, 0
    s_mov_b32 s49, 0
L_a_f1:
    buffer_load_dword v88, v86, s[40:43], s56 offen sc1
    s_add_u32 s49, s49, 1
    s_waitcnt vmcnt(0)
    v_cmp_eq_u32 vcc, -1, v88
    s_cmp_ge_u32 s49, {spin_max}
    s_cbranch_scc1 L_a_f1_done
    s_cbranch_vccz L_a_f1_done
    s_sleep 16
    s_branch L_a_f1
L_a_f1_done:
    """)
    if stamps: a("s_mov_b32 s95, s49")
    ts(4)
    if stamps: a("v_writelane_b32 v63, s95, 11")
    a(f"""
    v_add_f32_dpp v88, v88, v88 quad_perm:[1,0,3,2] {FULL}
    v_add_f32_dpp v88, v88, v88 quad_perm:[2,3,0,1] {FULL}
    v_add_f32_dpp v88, v88, v88 row_half_mirror {FULL}
    v_mov_b32_dpp v89, v88 row_ror:8 {FULL}
    """)
    if mimic: rbf(88); rbf(89)
    a(f"""
    v_mul_f32 v90, {f2u(-LOG2E):#x}, v88
    v_exp_f32 v90, v90
    v_add_f32 v90, 1.0, v90
    v_rcp_f32 v90, v90
    v_mul_f32 v90, v90, v88
    """)
    if mimic: rbf(90)
    a(f"""
    v_mul_f32 v90, v90, v89
    s_mov_b32 exec_lo, 0x00ff00ff
    s_mov_b32 exec_hi, 0x00ff00ff
    v_cvt_pk_bf16_f32 v44, v90, v90
    s_mov_b64 exec, -1
    """)
    perms(16, 44, 8)
    for cb in range(5): mfma(24+4*cb, 16, f"v[{64+4*cb}:{67+4*cb}]")
    a("s_cmp_eq_u32 s31, 0\n s_cselect_b32 s56, s50, s51")
    for k in range(20): a(f"v_mul_f32 v{24+k}, s56, v{24+k}")
    a("L_a_noffn2:")
    ts(5)
    if opt_h:
        a(f"""
    s_cmp_eq_u32 s31, 0
    s_cselect_b32 s68, s62, s63
    s_lshl_b32 s54, s33, 13
    s_add_u32 s54, s54, {WS_O}
    s_lshl_b32 s55, s32, 7
    s_add_u32 s54, s54, s55
    s_lshl_b32 s55, s3, 5
    s_add_u32 s54, s54, s55              ; + (32 split + 8 v)*4
    v_lshlrev_b32 v6, 9, v3
    v_lshl_add_u32 v6, v2, 3, v6         ; + 2g*4
    v_add_u32 v6, s54, v6
    v_mov_b32 v44, 0
    s_mul_i32 s54, s3, 2560
    v_lshlrev_b32 v7, 5, v3
    v_lshl_add_u32 v7, v2, 4, v7
    v_add_u32 v7, s54, v7
    s_waitcnt vmcnt(0)
    """)
    else:
        a(f"""
    s_cmp_eq_u32 s31, 0
    s_cselect_b32 s68, s62, s63
    s_lshl_b32 s54, s3, 7
    v_lshl_add_u32 v6, v2, 5, s54
    v_mov_b32 v44, 0x0c0c0c0c
    v_cmp_gt_u32 vcc, 8, v3
    v_cndmask_b32 v48, v44, v8, vcc
    v_cndmask_b32 v49, v44, v9, vcc
    v_cndmask_b32 v50, v44, v10, vcc
    v_cndmask_b32 v51, v44, v11, vcc
    v_cndmask_b32 v52, v44, v12, vcc
    v_cndmask_b32 v53, v44, v13, vcc
    v_cndmask_b32 v54, v44, v14, vcc
    v_cndmask_b32 v55, v44, v15, vcc
    s_mul_i32 s54, s3, 2560
    v_lshlrev_b32 v7, 5, v3
    v_lshl_add_u32 v7, v2, 4, v7
    v_add_u32 v7, s54, v7
    s_waitcnt vmcnt(0)
    """)
    stamp(3)
    a("s_barrier")
    stamp(4)
    if opt_h:
        a(f"""
    s_mov_b32 s49, 0
L_a_o:
    buffer_load_dwordx2 v[64:65], v6, s[40:43], 0 offen sc1
    s_add_u32 s49, s49, 1
    s_waitcnt vmcnt(0)
    v_max_u32 v66, v64, v65
    v_cmp_eq_u32 vcc, -1, v66
    s_cmp_ge_u32 s49, {spin_max}
    s_cbranch_scc1 L_a_o_done
    s_cbranch_vccnz L_a_o
L_a_o_done:
    """)
        for rr in (8, 4, 2, 1):
            a(f"v_add_f32_dpp v64, v64, v64 row_ror:{rr} {FULL}\n v_add_f32_dpp v65, v65, v65 row_ror:{rr} {FULL}")
        a(f"""
    s_mov_b32 exec_lo, 0x00ff00ff
    s_mov_b32 exec_hi, 0x00ff00ff
    v_cvt_pk_bf16_f32 v44, v64, v65
    s_mov_b64 exec, -1
    """)
        perms(16, 44, 8)
        perms(20, 44, 12)
        for cb in range(5): mfma(24+4*cb, 16, wreg(cb))
        for cb in range(5): mfma(24+4*cb, 20, wreg(5+cb))
    else:
        for hh in range(2):
            for w in range(4):
                a(f"ds_read_b128 v[{64+8*w+4*hh}:{67+8*w+4*hh}], v6 offset:{L_OP+512*w+16*hh}")
        def osum(k0):
            for k in range(k0, k0+4): a(f"v_add_f32 v{64+k}, v{64+k}, v{72+k}\n v_add_f32 v{80+k}, v{80+k}, v{88+k}")
            for k in range(k0, k0+4): a(f"v_add_f32 v{64+k}, v{64+k}, v{80+k}")
            for r in range(k0//2, k0//2+2): a(f"v_cvt_pk_bf16_f32 v{44+r}, v{64+2*r}, v{65+2*r}")
        def pm(rg, r):
            A = 16 + 4*(rg & 1)
            a(f"v_perm_b32 v{A+r}, v{44+(rg >> 1)}, v{44+(rg >> 1)}, v{48+4*(rg & 1)+r}")
        lgkm(4)
        osum(0)
        for r in range(4): pm(0, r)
        extra = []
        for rg in range(8):
            A = 16 + 4*(rg & 1)
            for cb in range(5):
                mfma(24+4*cb, A, wreg(rg*5+cb))
                if rg == 1 and cb == 0:
                    lgkm(0); osum(4)
                if rg < 7 and cb < 4: pm(rg+1, cb)
    a("s_mov_b32 exec_hi, 0")
    for cb in range(5): a(f"ds_write_b128 v7, v[{24+4*cb}:{27+4*cb}] offset:{L_YP+cb*512}")
    a(f"""
    s_mov_b32 exec_hi, -1
    s_waitcnt lgkmcnt(0)
    s_barrier
    s_branch L_pub
    """)
    a(f"""
L_stream:
    """)
    if stamps: a("s_memtime s[88:89]")
    a(f"""
    s_sub_u32 s57, s3, 4
    s_lshl_b32 s56, s33, 21
    s_lshl_b32 s58, s32, 19
    s_add_u32 s56, s56, s58
    v_lshlrev_b32 v4, 4, v1          ; lane*16
    s_lshr_b32 s58, s2, 3
    s_mul_i32 s58, s58, {ra}
    s_and_b32 s59, s2, 7
    s_mul_i32 s59, s59, {rx}
    s_add_u32 s58, s58, s59
    s_lshl_b32 s58, s58, {ru}
    s_lshl_b32 s59, s57, 12
    s_add_u32 s48, s58, s59
    s_and_b32 s48, s48, 0x7ffff
    v_mov_b32 v14, {OOB:#x}
    s_lshl_b32 s59, s34, 2
    s_add_u32 s59, s59, s57
    s_lshl_b32 s59, s59, 3
    s_add_u32 s59, s59, {WS_ML}
    v_mov_b32 v47, s59
    v_cmp_eq_u32 vcc, 0, v1
    v_cndmask_b32 v47, v14, v47, vcc
    s_waitcnt lgkmcnt(0)
    s_add_u32 s36, s6, s56
    s_addc_u32 s37, s7, 0
    s_mov_b32 s38, 0x80000
    s_mov_b32 s39, 0x20000
    s_add_u32 s44, s8, s56
    s_addc_u32 s45, s9, 0
    """)
    srd(40, 28, 29, hex(WS_SIZE))
    srd(64, 26, 27, 256)
    if a0: a("s_barrier")
    VF = SF if vflag is None else ((" " + vflag) if vflag else "")
    def sload(s, fl=None):
        a(f"buffer_load_dwordx4 {ring(s)}, v4, s[36:39], s48 offen offset:{(s&3)*1024}{SF if fl is None else fl}")
        if (s & 3) == 3: a("s_add_u32 s48, s48, 0x4000\n s_and_b32 s48, s48, 0x7ffff")
    for s in range(depth):
        if thr and s >= thr: a(f"s_waitcnt vmcnt({thr-1})")
        sload(s)
    a(f"""
    v_and_b32 v32, 1, v3
    v_mov_b32 v33, 0xffff
    v_mov_b32 v34, 0xffff0000
    v_cmp_eq_u32 vcc, 1, v32
    v_cndmask_b32 v33, v33, v34, vcc
    v_lshrrev_b32 v32, 1, v3              ; c>>1
    """)
    for r in range(4):
        a(f"v_cmp_eq_u32 vcc, {r}, v32\n v_cndmask_b32 v{16+r}, 0, v33, vcc")
    Q = 80
    a(f"""
    s_mov_b32 s50, 0xaaaaaaaa
    s_mov_b32 s51, 0xaaaaaaaa
    s_mov_b32 s52, 0xcccccccc
    s_mov_b32 s53, 0xcccccccc
    v_lshlrev_b32 v46, 4, v3
    s_barrier
    """)
    stamp(1)
    a(f"""
    ds_read_b128 v[{Q}:{Q+3}], v46 offset:{L_QB}
    s_lshl_b32 s59, s31, 2
    v_mov_b32 v56, s59
    ds_read_b32 v56, v56 offset:{L_G}
    s_mov_b32 s49, 0
    s_waitcnt lgkmcnt(0)
L_kloop:
    """)
    Pa, Pb, Qe, Qo, T0, T1, t1, t2 = 32, 33, 36, 37, 40, 41, 42, 43
    R = [38, 39, 34, 35]
    U = [44, 45]
    ngroups = depth//16
    assert depth in (16, 32)
    for grp in range(ngroups):
        for k in range(8):
            for half, P in ((0, Pa), (1, Pb)):
                s = grp*16 + 2*k + half
                if not thr: a(f"s_waitcnt vmcnt({depth-1})")
                a(f"v_mov_b32 v{P}, 0")
                for r in range(4): a(f"v_dot2c_f32_bf16 v{P}, {ringr(s, r)}, v{Q+r}")
                if thr: a(f"s_waitcnt vmcnt({thr-1})")
                sload(s)
            Qx = Qe if k % 2 == 0 else Qo
            a(f"v_add_f32_dpp v{Qx}, v{Pa}, v{Pa} row_ror:8 row_mask:0xf bank_mask:0x3")
            a(f"v_add_f32_dpp v{Qx}, v{Pb}, v{Pb} row_ror:8 row_mask:0xf bank_mask:0xc")
            if k % 2 == 1:
                Rx = R[k >> 1]
                a(f"v_add_f32_dpp v{Rx}, v{Qe}, v{Qe} row_shl:4 row_mask:0xf bank_mask:0x5")
                a(f"v_add_f32_dpp v{Rx}, v{Qo}, v{Qo} row_shr:4 row_mask:0xf bank_mask:0xa")
            if k in (3, 7):
                Re, Ro = (R[0], R[1]) if k == 3 else (R[2], R[3])
                T = T0 if k == 3 else T1
                a(f"v_add_f32_dpp v{t1}, v{Re}, v{Re} quad_perm:[2,3,0,1] {FULL}")
                a(f"v_add_f32_dpp v{t2}, v{Ro}, v{Ro} quad_perm:[2,3,0,1] {FULL}")
                a(f"v_cndmask_b32 v{T}, v{t1}, v{t2}, s[52:53]")
        a(f"v_add_f32_dpp v{t1}, v{T0}, v{T0} quad_perm:[1,0,3,2] {FULL}")
        a(f"v_add_f32_dpp v{t2}, v{T1}, v{T1} quad_perm:[1,0,3,2] {FULL}")
        a(f"v_cndmask_b32 v{U[grp]}, v{t1}, v{t2}, s[50:51]")
    niter = 128//depth
    for k in range(8-ngroups): a(f"v_mov_b32 v{8+k}, v{8+k+ngroups}")
    for gidx in range(ngroups): a(f"v_mov_b32 v{8+8-ngroups+gidx}, v{U[gidx]}")
    a(f"""
    """)
    ts_dyn(16)
    a(f"""
    s_add_u32 s49, s49, 1
    s_cmp_eq_u32 s49, {niter-1}
    s_cselect_b32 s36, s44, s36
    s_cselect_b32 s37, s45, s37
    s_cmp_lt_u32 s49, {niter}
    s_cbranch_scc1 L_kloop
    """)
    stamp(2)
    c1 = f2u(128**-0.5*LOG2E)
    a(f"""
    v_max3_f32 v32, v8, v9, v10
    v_max3_f32 v32, v32, v11, v12
    v_max3_f32 v32, v32, v13, v14
    v_max_f32 v32, v32, v15
    """)
    allreduce("v_max_f32", 32)
    a(f"v_mov_b32 v33, {c1:#x}\n v_mul_f32 v32, v33, v32")
    for k in range(8): a(f"v_fma_f32 v{8+k}, v{8+k}, v33, -v32")
    for k in range(8): a(f"v_exp_f32 v{8+k}, v{8+k}")
    a(f"""
    v_add_f32 v34, v8, v9
    v_add_f32 v35, v10, v11
    v_add_f32 v36, v12, v13
    v_add_f32 v37, v14, v15
    v_add_f32 v34, v34, v35
    v_add_f32 v36, v36, v37
    v_add_f32 v34, v34, v36
    """)
    allreduce("v_add_f32", 34)
    for k in range(8): a(f"v_cvt_pk_bf16_f32 v{8+k}, v{8+k}, v{8+k}")
    a(f"""
    v_min_u32 v36, 0xfffffffe, v32
    v_min_u32 v37, 0xfffffffe, v34
    {"s_nop 0" if x_noml else "buffer_store_dwordx2 v[36:37], v47, s[40:43], 0 offen sc1"}
    v_mov_b32 v28, 0
    v_mov_b32 v29, 0
    v_mov_b32 v30, 0
    v_mov_b32 v31, 0
    """)
    if opt_h: a(f"""
    s_lshl_b32 s58, s34, 2
    s_add_u32 s58, s58, s57
    s_lshl_b32 s58, s58, 9
    s_add_u32 s58, s58, {WS_O}
    v_lshlrev_b32 v46, 5, v3             ; c*32
    v_lshl_add_u32 v46, v2, 4, v46       ; + lg*16
    v_add_u32 v46, s58, v46
    v_mov_b32 v55, {OOB:#x}
    v_cmp_gt_u32 vcc, 32, v1
    v_cndmask_b32 v46, v55, v46, vcc
    """)
    else: a(f"""
    s_lshl_b32 s58, s57, 9
    v_lshlrev_b32 v46, 5, v3             ; c*32
    v_lshl_add_u32 v46, v2, 4, v46       ; + lg*16
    v_add_u32 v46, s58, v46
    """)
    a(f"""
    v_and_b32 v48, 31, v1
    v_lshlrev_b32 v48, 2, v48
    v_mov_b32 v49, 0x80000
    s_lshl_b32 s58, s33, 7
    s_add_u32 s58, s58, {WS_ML}
    v_lshl_add_u32 v51, v3, 3, s58
    s_mov_b32 s49, 0
L_vloop:
    """)
    def vpos(s, last):
        t = s & 15
        c = 4*rev2(t & 3) + rev2(t >> 2)
        P = 8 + (s >> 4)
        A = 20 + 4*(s & 1)
        a(f"s_waitcnt vmcnt({depth-1-s if last else depth-1})")
        for r in range(4): a(f"v_and_b32_dpp v{A+r}, v{P}, v{16+r} row_newbcast:{c} {FULL}")
        mfma(28, A, ring(s))
        if not last:
            if vthr: a(f"s_waitcnt vmcnt({vthr-1})")
            sload(s, VF)
    for s_ in range(depth): vpos(s_, False)
    for k in range(8-ngroups): a(f"v_mov_b32 v{8+k}, v{8+k+ngroups}")
    ts_dyn(32)
    i_flag, i_ml = (niter-4, niter-3) if not x_noml else (99, 99)
    if x_noflag and not x_noml: i_flag = 99
    a(f"""
    s_cmp_eq_u32 s49, {i_flag}
    s_cbranch_scc0 L_v_n1
    buffer_load_dword v50, v48, s[64:67], 0 offen sc1
L_v_n1:
    s_cmp_eq_u32 s49, {i_ml}
    s_cbranch_scc0 L_v_n2
    s_mov_b32 s59, {spin_max if x_noflag else 0}
    s_waitcnt vmcnt({depth})
L_v_fl:
    v_cmp_gt_u32 vcc, v49, v50
    s_add_u32 s59, s59, 1
    s_cmp_ge_u32 s59, {spin_max}
    s_cbranch_scc1 L_v_fl_done
    s_cbranch_vccz L_v_fl_done
    s_sleep 32
    buffer_load_dword v50, v48, s[64:67], 0 offen sc1
    s_waitcnt vmcnt(0)
    s_branch L_v_fl
L_v_fl_done:
    buffer_load_dwordx2 v[52:53], v51, s[40:43], 0 offen sc1
L_v_n2:
    s_add_u32 s49, s49, 1
    s_cmp_lt_u32 s49, {niter-1}
    s_cbranch_scc1 L_vloop
    s_mov_b32 s59, {spin_max if x_noml else 0}
    s_waitcnt vmcnt({depth})
L_v_ml:
    v_max_u32 v54, v52, v53
    v_cmp_eq_u32 vcc, -1, v54
    s_add_u32 s59, s59, 1
    s_cmp_ge_u32 s59, {spin_max}
    s_cbranch_scc1 L_v_ml_done
    s_cbranch_vccz L_v_ml_done
    s_sleep 8
    buffer_load_dwordx2 v[52:53], v51, s[40:43], 0 offen sc1
    s_waitcnt vmcnt(0)
    s_branch L_v_ml
L_v_ml_done:
    v_mov_b32 v54, v52
    """)
    for rr in (8, 4, 2, 1): a(f"v_max_f32_dpp v54, v54, v54 row_ror:{rr} {FULL}")
    a("v_sub_f32 v52, v52, v54\n v_exp_f32 v52, v52\n v_mul_f32 v53, v52, v53")
    for rr in (8, 4, 2, 1): a(f"v_add_f32_dpp v53, v53, v53 row_ror:{rr} {FULL}")
    a(f"""
    v_rcp_f32 v53, v53
    s_lshl_b32 s59, s32, 2
    s_add_u32 s59, s59, s57
    v_mul_f32 v52, v52, v53
    v_mul_f32 v52, v52, v56
    s_nop 0
    v_readlane_b32 s68, v52, s59
    """)
    for s_ in range(depth): vpos(s_, True)
    ts(35)
    if stamps: a("s_memtime s[90:91]")
    for k in range(4): a(f"v_mul_f32 v{28+k}, s68, v{28+k}")
    if opt_h:
        for k in range(4): a(f"v_min_u32 v{28+k}, 0xfffffffe, v{28+k}")
        a("buffer_store_dwordx4 v[28:31], v46, s[40:43], 0 offen sc1")
        stamp(3)
        a("s_barrier")
    else:
        stamp(3)
        a(f"""
    s_mov_b32 exec_hi, 0
    ds_write_b128 v46, v[28:31] offset:{L_OP}
    s_mov_b32 exec_hi, -1
    s_waitcnt lgkmcnt(0)
    s_barrier
    """)
    stamp(4)
    a("s_barrier\nL_pub:")
    stamp(5)
    a(f"""
    s_cmp_ge_u32 s3, 3
    s_cbranch_scc1 L_nopub
    v_lshlrev_b32 v46, 4, v0
    """)
    for w in range(4): a(f"ds_read_b128 v[{64+4*w}:{67+4*w}], v46 offset:{L_YP+2560*w}")
    a(f"""
    s_mul_i32 s54, s34, 2560
    v_add_u32 v47, s54, v46
    v_mov_b32 v45, {OOB:#x}
    v_cmp_gt_u32 vcc, 160, v0
    v_cndmask_b32 v47, v45, v47, vcc
    s_waitcnt lgkmcnt(0)
    """)
    for k in range(4): a(f"v_add_f32 v{64+k}, v{64+k}, v{68+k}\n v_add_f32 v{72+k}, v{72+k}, v{76+k}")
    for k in range(4): a(f"v_add_f32 v{64+k}, v{64+k}, v{72+k}")
    for k in range(4): a(f"v_min_u32 v{64+k}, 0xfffffffe, v{64+k}")
    a(f"""
    buffer_store_dwordx4 v[64:67], v47, s[40:43], 0 offen sc1
L_nopub:
    """)
    stamp(6)
    a(f"""
    s_cmp_ge_u32 s2, 80
    s_cbranch_scc1 L_fin
    s_cmp_ge_u32 s2, 40
    s_cselect_b32 s54, 1, 0              ; batch
    s_mul_i32 s55, s54, 40
    s_sub_u32 s55, s2, s55
    v_lshrrev_b32 v44, 2, v0             ; i
    v_and_b32 v45, 3, v0                 ; cq
    s_lshl_b32 s56, s55, 6
    v_lshl_add_u32 v45, v45, 4, s56
    s_mul_i32 s56, s54, {128*2560}
    v_mul_u32_u24 v46, 2560, v44
    v_add3_u32 v46, v46, v45, s56        ; Y address
    s_mov_b32 s49, 0
L_g:
    buffer_load_dwordx4 v[48:51], v46, s[40:43], 0 offen sc1
    s_add_u32 s49, s49, 1
    s_waitcnt vmcnt(0)
    v_max_u32 v56, v48, v49
    v_max3_u32 v56, v56, v50, v51
    v_cmp_eq_u32 vcc, -1, v56
    s_cmp_ge_u32 s49, {spin_max}
    s_cbranch_scc1 L_g_done
    """)
    if gmask: a("s_and_b64 exec, exec, vcc\n s_cbranch_execnz L_g")
    else: a("s_cbranch_vccnz L_g")
    a(f"""
L_g_done:
    s_mov_b64 exec, -1
    """)
    for rr in (8, 4):
        for k in range(4): a(f"v_add_f32_dpp v{48+k}, v{48+k}, v{48+k} row_ror:{rr} {FULL}")
    a(f"""
    v_lshlrev_b32 v44, 9, v3             ; cq*4*128
    s_lshl_b32 s56, s3, 4
    v_lshl_add_u32 v45, v2, 2, s56       ; (wave*4+row)*4
    v_add_u32 v44, v44, v45
    s_mov_b32 exec_lo, 0x000f000f
    s_mov_b32 exec_hi, 0x000f000f
    """)
    for k in range(4): a(f"ds_write_b32 v44, v{48+k} offset:{L_RP+128*k}")
    a(f"""
    s_mov_b64 exec, -1
    s_waitcnt lgkmcnt(0)
    s_barrier
    s_cmp_eq_u32 s3, 0
    s_cbranch_scc0 L_fin
    v_lshlrev_b32 v44, 5, v1
    ds_read_b128 v[48:51], v44 offset:{L_RP}
    ds_read_b128 v[52:55], v44 offset:{L_RP+16}
    """)
    srd(64, 24, 25, 2560)
    a(f"""
    s_mul_i32 s56, s54, 1280
    s_lshl_b32 s55, s55, 5
    s_add_u32 s56, s56, s55
    v_lshrrev_b32 v45, 2, v1
    v_lshl_add_u32 v45, v45, 1, s56
    v_and_b32 v46, 3, v1
    v_mov_b32 v43, {OOB:#x}
    v_cmp_eq_u32 vcc, 0, v46
    v_cndmask_b32 v45, v43, v45, vcc
    s_waitcnt lgkmcnt(0)
    v_add_f32 v48, v48, v49
    v_add_f32 v50, v50, v51
    v_add_f32 v52, v52, v53
    v_add_f32 v54, v54, v55
    v_add_f32 v48, v48, v50
    v_add_f32 v52, v52, v54
    v_add_f32 v48, v48, v52
    v_add_f32_dpp v48, v48, v48 quad_perm:[1,0,3,2] {FULL}
    v_add_f32_dpp v48, v48, v48 quad_perm:[2,3,0,1] {FULL}
    v_cvt_pk_bf16_f32 v48, v48, v48
    buffer_store_short v48, v45, s[64:67], 0 offen
L_fin:
    """)
    if stamps:
        a(f"""
        s_memrealtime s[86:87]
        s_getreg_b32 s54, hwreg(HW_REG_XCC_ID)
        s_waitcnt lgkmcnt(0)
        s_lshl_b32 s55, s2, 3
        s_add_u32 s55, s55, s3
        s_lshl_b32 s55, s55, 6
        s_add_u32 s55, s55, {WS_STAMP}
        s_mov_b32 s40, s28
        s_mov_b32 s41, s29
        s_mov_b32 s42, 0x400000
        s_mov_b32 s43, 0x20000
        v_mov_b32 v48, s72
        v_mov_b32 v49, s74
        v_mov_b32 v50, s76
        v_mov_b32 v51, s78
        v_mov_b32 v52, s80
        v_mov_b32 v53, s82
        v_mov_b32 v54, s84
        v_mov_b32 v55, s86
        v_mov_b32 v56, s54
        v_mov_b32 v45, s55
        v_mov_b32 v43, {OOB:#x}
        v_cmp_eq_u32 vcc, 0, v1
        v_cndmask_b32 v45, v43, v45, vcc
        buffer_store_dwordx4 v[48:51], v45, s[40:43], 0 offen
        buffer_store_dwordx4 v[52:55], v45, s[40:43], 0 offen offset:16
        v_mov_b32 v57, s88
        v_mov_b32 v58, s90
        v_mov_b32 v59, s92
        buffer_store_dwordx4 v[56:59], v45, s[40:43], 0 offen offset:32
        s_lshl_b32 s55, s2, 3
        s_add_u32 s55, s55, s3
        s_lshl_b32 s55, s55, 8
        s_add_u32 s55, s55, {WS_STAMP + 0x40000}
        v_lshl_add_u32 v45, v1, 2, s55
        buffer_store_dword v63, v45, s[40:43], 0 offen
        """)
    a("L_end:\n s_endpgm")
    text, n = hz.fix(a.text())
    return wrap(text, 256, 512, LDS_BYTES, vgpr=256, sgpr=100), n

if __name__ == "__main__":
    from build import build
    import json
    names = []
    for spec in sys.argv[1:]:
        kw = {}
        name, _, rest = spec.partition(":")
        for p in rest.split(","):
            if not p: continue
            k, v = p.split("=")
            kw[k] = v if k in ("sflag", "wflag", "woflag", "vflag") else int(v, 0)
        for k in ("sflag", "wflag", "woflag", "vflag"):
            if kw.get(k) == "none": kw[k] = ""
            if k in kw: kw[k] = kw[k].replace("+", " ")
        t, n = gen(**kw)
        open(f"work/{name}.s", "w").write(t)
        build(f"work/{name}.s")
        print(name, "nops inserted:", n, "lines:", t.count("\n"))
        names.append(name)
    print(json.dumps(["work/bench.py", "cdna_kernels/cdna_launch.py", "cdna_kernels/cdna_unwritten_srd_check.py", "gated_mix__mha_block_cached__swiglu_ffn__decode_np.py"] + sum([[f"work/{n}.co", f"work/{n}.s"] for n in names], [])))
```

```python
import sys, struct
sys.path.insert(0, "work")
from asmlib import *
import hz

SENT = 0xFFFFFFFF
OOB = 0x7FFF0000
WS_Y = 0
WS_ML = 0x19A000
WS_Q = 0xA2000
WS_F1 = 0xE2000
WS_O = 0x11A000
WS_SIZE = 0x1BA000
WS_STAMP = 0x200000
L_QB, L_G, L_OP, L_YP, L_RP = 0, 1024, 2048, 4096, 0
L_ST = L_YP
LDS_BYTES = 16384
LOG2E = 1.4426950408889634
def f2u(f): return struct.unpack("<I", struct.pack("<f", f))[0]
def rev2(x): return ((x & 1) << 1) | ((x >> 1) & 1)
FULL = "row_mask:0xf bank_mask:0xf"

def gen(depth=32, sflag="nt", wflag="nt", woflag=None, stamps=0, spin_max=1 << 16, mimic=1, wo_pace=0, sleep=4, thr=6, vthr=0, wo_n=40, ml_delay=0, ml_sleep=16, hmap=0, ra=8, rx=1, ru=12, x_noflag=0, x_noml=0, x_noffn=0, a0=0, qsleep=0, opt_h=0, gmask=1, tail2=1, late=1, vflag=None, x_noq=0, x_nots=0, x_nocheck=0, ldsconf=1, cstride=8, wdflag=None, gpipe=1, prio=0, oflag='', swaproles=0):
    a = Asm()
    SF = (" " + sflag) if sflag else ""
    WF = (" " + wflag) if wflag else ""
    WOF = WF if woflag is None else ((" " + woflag) if woflag else "")
    WDF = WF if wdflag is None else ((" " + wdflag) if wdflag else "")
    RING = 256 - depth*4
    def ring(s): return f"v[{RING+4*s}:{RING+4*s+3}]"
    def ringr(s, r): return f"v{RING+4*s+r}"
    W0 = 96
    def wreg(t): return f"v[{W0+4*t}:{W0+4*t+3}]"
    def stamp(k):
        if stamps: a(f"s_memrealtime s[{72+2*k}:{73+2*k}]")
    def xstamp(k):
        if stamps: a(f"s_memrealtime s[{88+2*k}:{89+2*k}]")
    SR = [63]
    def ts(idx):
        if stamps: a(f"s_memrealtime s[96:97]\n s_waitcnt lgkmcnt(0)\n v_writelane_b32 v{SR[0]}, s96, {idx}")
    def ts_dyn(base):
        if stamps and not x_nots: a(f"s_memrealtime s[96:97]\n s_add_u32 s94, s49, {base}\n s_waitcnt lgkmcnt(0)\n s_mov_b32 m0, s94\n v_writelane_b32 v{SR[0]}, s96, m0")
    def lgkm(n): a(f"s_waitcnt lgkmcnt({0 if stamps else n})")
    def allreduce(op, v):
        for rr in (8, 4, 2, 1): a(f"{op}_dpp v{v}, v{v}, v{v} row_ror:{rr} {FULL}")
        a(f"v_readlane_b32 s54, v{v}, 0\n v_readlane_b32 s55, v{v}, 16\n v_readlane_b32 s56, v{v}, 32\n v_readlane_b32 s58, v{v}, 48")
        a(f"v_mov_b32 v{v}, s54\n {op} v{v}, s55, v{v}\n {op} v{v}, s56, v{v}\n {op} v{v}, s58, v{v}")
    def rbf(v):
        a(f"v_cvt_pk_bf16_f32 v{v}, v{v}, v{v}\n v_lshlrev_b32 v{v}, 16, v{v}")
    def srd(base, lo, hi, size):
        a(f"s_mov_b32 s{base}, s{lo}\n s_mov_b32 s{base+1}, s{hi}\n s_mov_b32 s{base+2}, {size}\n s_mov_b32 s{base+3}, 0x20000")
    def mfma(d, A, B, C=None):
        a(f"v_mfma_f32_16x16x32_bf16 v[{d}:{d+3}], v[{A}:{A+3}], {B}, " + (C if C is not None else f"v[{d}:{d+3}]"))
    def perms(A, X, sel):
        for r in range(4): a(f"v_perm_b32 v{A+r}, v{X}, v{X}, v{sel+r}")
    a(f"""
    s_cmp_ge_u32 s2, 256
    s_cbranch_scc1 L_end
    s_load_dwordx16 s[4:19], s[0:1], 0
    s_load_dwordx8 s[20:27], s[0:1], 64
    s_load_dwordx2 s[28:29], s[0:1], 96
    """)
    stamp(0)
    if stamps: a("v_mov_b32 v63, 0")
    if swaproles: a("v_xor_b32 v0, 0x100, v0")
    a(f"""
    v_lshrrev_b32 v2, 6, v0
    v_and_b32 v1, 63, v0
    s_and_b32 s54, s2, 7             ; x
    v_readfirstlane_b32 s3, v2       ; wave
    s_lshr_b32 s55, s2, 3            ; j
    s_and_b32 s30, s55, 3
    """)
    if hmap == 0: a("s_lshl_b32 s56, s54, 2\n s_add_u32 s30, s30, s56          ; h = 4x + (j&3)")
    else: a("s_lshl_b32 s30, s30, 3\n s_add_u32 s30, s30, s54          ; h = x + 8 (j&3)")
    a(f"""
    s_bfe_u32 s31, s55, 0x10002      ; b = (j>>2)&1
    s_lshr_b32 s32, s55, 3           ; split
    s_lshl_b32 s33, s31, 5
    s_add_u32 s33, s33, s30          ; bh
    s_lshl_b32 s34, s33, 2
    s_add_u32 s34, s34, s32
    v_and_b32 v3, 15, v1             ; c
    v_lshrrev_b32 v2, 4, v1          ; g
    s_cmp_ge_u32 s3, 4
    s_cbranch_scc1 L_stream
    """)
    def selectors():
        a(f"""
        v_and_b32 v70, 1, v3
        v_mov_b32 v71, 0x0c0c0100
        v_mov_b32 v72, 0x01000c0c
        v_mov_b32 v73, 0x0c0c0302
        v_mov_b32 v74, 0x03020c0c
        v_cmp_eq_u32 vcc, 1, v70
        v_cndmask_b32 v71, v71, v72, vcc
        v_cndmask_b32 v73, v73, v74, vcc
        v_mov_b32 v75, 0x0c0c0c0c
        v_bfe_u32 v70, v3, 1, 2
        """)
        for r in range(4):
            a(f"v_cmp_eq_u32 vcc, {r}, v70\n v_cndmask_b32 v{8+r}, v75, v71, vcc\n v_cndmask_b32 v{12+r}, v75, v73, vcc")
    def tile20(extra=0):
        for t in range(20):
            A = 16 + 4*(t & 1)
            perms(A, 44 + (t >> 1), 8 + 4*(t & 1))
            a(f"s_waitcnt vmcnt({19-t+extra})")
            mfma(24, A, wreg(t), "0" if t == 0 else None)
    def tau_fg():
        a(f"""
        s_and_b32 s54, s2, 7                 ; x
        s_lshr_b32 s55, s2, 3                ; j
        s_lshr_b32 s56, s54, 1               ; x>>1
        s_mul_i32 s57, s56, 24
        s_add_u32 s57, s57, 128
        s_add_u32 s57, s57, s55
        s_cmp_ge_u32 s55, 24
        s_cselect_b32 s57, 999, s57          ; odd x
        s_lshl_b32 s35, s56, 5
        s_add_u32 s35, s35, s55              ; even x
        s_bitcmp1_b32 s54, 0
        s_cselect_b32 s35, s57, s35          ; tau: gate / up tile (>= 224: none)
        s_lshl_b32 s57, s32, 2
        s_and_b32 s59, s55, 3
        s_add_u32 s57, s57, s59              ; jb
        s_mul_i32 s59, s56, 11
        s_add_u32 s59, s59, s57
        s_add_u32 s59, s59, 59               ; 64 + 11*(x>>1) + jb - 5
        s_cmp_lt_u32 s57, 5
        s_cselect_b32 s59, 999, s59
        s_lshl_b32 s61, s56, 4
        s_add_u32 s61, s61, s57
        s_bitcmp1_b32 s54, 0
        s_cselect_b32 s61, s59, s61          ; fg: w_down row group (>= 108: none)
        """)
        if x_noffn: a("s_movk_i32 s35, 999\n s_movk_i32 s61, 999")
        a(f"""
        """)
    def gates():
        srd(36, 22, 23, 1280)
        a(f"""
    v_lshlrev_b32 v72, 5, v1
    v_mov_b32 v73, {OOB:#x}
    v_cmp_gt_u32 vcc, 40, v1
    v_cndmask_b32 v72, v73, v72, vcc
    buffer_load_dwordx4 v[44:47], v72, s[44:47], 0 offen
    buffer_load_dwordx4 v[48:51], v72, s[44:47], 0 offen offset:16
    buffer_load_dwordx4 v[52:55], v72, s[44:47], 0 offen offset:1280
    buffer_load_dwordx4 v[56:59], v72, s[44:47], 0 offen offset:1296
    buffer_load_dwordx4 v[64:67], v72, s[36:39], 0 offen
    buffer_load_dwordx4 v[68:71], v72, s[36:39], 0 offen offset:16
    """)
        a(f"""
    s_waitcnt vmcnt(0)
    v_mov_b32 v74, 0
    v_mov_b32 v75, 0
    """)
        if mimic:
            for bb in range(2):
                for k in range(8):
                    x = 44 + 8*bb + k; g_ = 64 + k
                    a(f"""
                v_lshlrev_b32 v76, 16, v{x}
                v_lshlrev_b32 v77, 16, v{g_}
                v_and_b32 v78, 0xffff0000, v{x}
                v_and_b32 v79, 0xffff0000, v{g_}
                v_mul_f32 v76, v76, v77
                v_mul_f32 v78, v78, v79
                v_cvt_pk_bf16_f32 v76, v76, v78
                v_lshlrev_b32 v77, 16, v76
                v_and_b32 v76, 0xffff0000, v76
                v_add_f32 v{74+bb}, v{74+bb}, v77
                v_add_f32 v{74+bb}, v{74+bb}, v76
                """)
        else:
            for k in range(8):
                a(f"v_dot2c_f32_bf16 v74, v{44+k}, v{64+k}\n v_dot2c_f32_bf16 v75, v{52+k}, v{64+k}")
        allreduce("v_add_f32", 74)
        allreduce("v_add_f32", 75)
        for bb in range(2):
            z = 74 + bb
            if mimic: rbf(z)
            a(f"""
        v_mul_f32 v{z}, {f2u(-LOG2E):#x}, v{z}
        v_exp_f32 v{z}, v{z}
        v_add_f32 v{z}, 1.0, v{z}
        v_rcp_f32 v{z}, v{z}
        """)
            if mimic: rbf(z)
            a(f"v_sub_f32 v{76+bb}, 1.0, v{z}")
            if mimic: rbf(76+bb)
        a(f"""
        v_mov_b32 v72, 0
        ds_write_b128 v72, v[74:77] offset:{L_G}
        ds_write_b32 v72, v72 offset:{L_G+16}
        s_waitcnt lgkmcnt(0)
        """)
    def slot_offset():
        a(f"""
        v_lshrrev_b32 v7, 1, v2
        v_lshlrev_b32 v7, 9, v7              ; bb*512
        v_and_b32 v5, 1, v2
        v_lshl_add_u32 v7, v5, 4, v7
        v_lshl_add_u32 v7, v3, 5, v7
        """)
    a(f"""
    s_lshl_b32 s57, s31, 2
    s_add_u32 s57, s57, s32
    s_lshl_b32 s60, s30, 3
    s_add_u32 s60, s60, s57
    s_cmp_eq_u32 s3, {99 if x_noq else 0}
    s_cbranch_scc0 L_a_notw0
    s_mul_i32 s57, s57, 80
    v_mad_u32_u24 v4, v2, 20, s57
    v_lshrrev_b32 v6, 3, v3
    v_mul_u32_u24 v6, 1280, v6           ; bb*1280
    v_lshl_add_u32 v5, v4, 1, v6         ; x offset
    s_lshl_b32 s57, s30, 8
    v_lshlrev_b32 v4, 13, v4
    v_lshl_add_u32 v7, v3, 4, s57
    v_add_u32 v4, v4, v7
    s_mov_b32 s48, 0
    s_movk_i32 s49, 0x2000
    """)
    a("v_mov_b32 v55, v5")
    slot_offset()
    a(f"""
    v_mov_b32 v5, v55
    s_lshl_b32 s58, s60, 10
    s_add_u32 s58, s58, {WS_Q}
    s_lshl_b32 s56, s30, 13
    s_lshl_b32 s57, s31, 9
    s_add_u32 s56, s56, s57
    s_add_u32 s56, s56, {WS_Q}
    s_add_u32 s57, s56, 4096
    v_lshlrev_b32 v6, 3, v1
    s_waitcnt lgkmcnt(0)
    """)
    srd(40, 28, 29, hex(WS_SIZE))
    a(f"""
    buffer_load_dwordx4 v[28:31], v7, s[40:43], s58 offen sc1
    """)
    for rb in range(8):
        a(f"buffer_load_dwordx2 v[{80+2*rb}:{81+2*rb}], v6, s[40:43], {'s56' if rb < 4 else 's57'} offen offset:{(rb & 3)*1024} sc1")
    srd(44, 4, 5, 2560)
    srd(36, 10, 11, 5242880)
    for k in range(5): a(f"buffer_load_dwordx2 v[{44+2*k}:{45+2*k}], v5, s[44:47], 0 offen offset:{8*k}")
    for t in range(20):
        a(f"buffer_load_dwordx4 {wreg(t)}, v4, s[36:39], s48 offen{WF}")
        if t < 19: a("s_add_u32 s48, s48, s49")
    if a0: a("s_barrier")
    selectors()
    srd(64, 26, 27, 256)
    a(f"""
    s_mul_i32 s59, s30, {cstride}
    v_mov_b32 v54, s59
    s_mov_b32 s69, 0x10001
    s_waitcnt vmcnt(20)
    """)
    tile20()
    xstamp(0)
    a("v_lshlrev_b32 v5, 2, v1")
    for k in range(4): a(f"v_not_b32 v{28+k}, v{28+k}")
    for k in range(4): a(f"v_bfi_b32 v{24+k}, 1, v{28+k}, v{24+k}")
    a(f"""
    buffer_store_dwordx4 v[24:27], v7, s[40:43], s58 offen sc1
    s_mov_b32 s49, 0
L_a_qp:
    """)
    for rb in range(8):
        a(f"buffer_load_dwordx2 v[{64+2*rb}:{65+2*rb}], v6, s[40:43], {'s56' if rb < 4 else 's57'} offen offset:{(rb & 3)*1024} sc1")
    a("s_add_u32 s49, s49, 1\n s_waitcnt vmcnt(0)")
    for k in range(16): a(f"v_xor_b32 v{28 if k == 0 else 29}, v{64+k}, v{80+k}" + ("" if k == 0 else "\n v_and_b32 v28, v28, v29"))
    a(f"""
    v_and_b32 v28, 1, v28
    v_cmp_eq_u32 vcc, 0, v28
    s_cmp_ge_u32 s49, {spin_max}
    s_cbranch_scc1 L_a_q_got
    s_cbranch_vccz L_a_q_got
    {"s_sleep %d" % qsleep if qsleep else ""}
    s_cmp_lt_u32 s49, 6
    s_cbranch_scc1 L_a_qp
    s_cmp_eq_u32 s49, 6
    s_cbranch_scc0 L_a_q_noset
    v_mov_b32 v28, {OOB:#x}
    v_cmp_eq_u32 vcc, 0, v1
    v_cndmask_b32 v28, v28, v54, vcc
    v_mov_b32 v29, 1
    buffer_atomic_add v29, v28, s[64:67], 0 offen sc1
    s_mov_b32 s69, 0x10000
L_a_q_noset:
    buffer_load_dword v28, v54, s[64:67], 0 offen sc1
    s_waitcnt vmcnt(0)
    v_and_b32 v28, 0xffff, v28
    s_nop 0
    v_readfirstlane_b32 s55, v28
    s_cmp_ge_u32 s55, 8
    s_cbranch_scc1 L_a_q_flagged
    s_sleep 8
    s_branch L_a_qp
L_a_q_flagged:
    """)
    for rb in range(8):
        a(f"buffer_load_dwordx2 v[{64+2*rb}:{65+2*rb}], v6, s[40:43], {'s56' if rb < 4 else 's57'} offen offset:{(rb & 3)*1024} sc1")
    a("s_waitcnt vmcnt(0)\nL_a_q_got:")
    xstamp(1)
    if stamps: a("s_mov_b32 s92, s49")
    for k in range(16): a(f"v_and_b32 v{64+k}, -2, v{64+k}")
    for k in range(2):
        a(f"""
        v_add_f32 v{64+k}, v{64+k}, v{66+k}
        v_add_f32 v{68+k}, v{68+k}, v{70+k}
        v_add_f32 v{72+k}, v{72+k}, v{74+k}
        v_add_f32 v{76+k}, v{76+k}, v{78+k}
        v_add_f32 v{64+k}, v{64+k}, v{68+k}
        v_add_f32 v{72+k}, v{72+k}, v{76+k}
        v_add_f32 v{64+k}, v{64+k}, v{72+k}
        """)
    a(f"""
    v_cvt_pk_bf16_f32 v64, v64, v65
    ds_write_b32 v5, v64 offset:{L_QB}
    s_waitcnt lgkmcnt(0)
    s_branch L_a_barA
L_a_notw0:
    """)
    if a0: a("s_barrier")
    a(f"""
    s_waitcnt lgkmcnt(0)
    """)
    srd(44, 4, 5, 2560)
    srd(40, 28, 29, hex(WS_SIZE))
    srd(64, 26, 27, 256)
    tau_fg()
    a(f"""
    s_cmp_eq_u32 s3, 2
    s_cbranch_scc0 L_a_noclear
    v_mov_b32 v64, {SENT:#x}
    v_mov_b32 v65, v64
    v_mov_b32 v66, v64
    v_mov_b32 v67, v64
    v_lshlrev_b32 v68, 4, v1
    s_mul_i32 s56, s34, 2560
    v_mov_b32 v70, {OOB:#x}
    v_cmp_gt_u32 vcc, 32, v1
    v_cndmask_b32 v69, v70, v68, vcc
    buffer_store_dwordx4 v[64:67], v68, s[40:43], s56 offen sc1
    buffer_store_dwordx4 v[64:67], v68, s[40:43], s56 offen offset:1024 sc1
    buffer_store_dwordx4 v[64:67], v69, s[40:43], s56 offen offset:2048 sc1
    """)
    if opt_h: a(f"""
    s_lshl_b32 s56, s34, 11
    s_add_u32 s56, s56, {WS_O}
    buffer_store_dwordx4 v[64:67], v68, s[40:43], s56 offen sc1
    buffer_store_dwordx4 v[64:67], v68, s[40:43], s56 offen offset:1024 sc1
    """)
    a(f"""
    s_lshl_b32 s56, s34, 9
    s_add_u32 s56, s56, {WS_ML}
    v_cmp_gt_u32 vcc, 32, v1
    v_cndmask_b32 v69, v70, v68, vcc
    buffer_store_dwordx4 v[64:67], v69, s[40:43], s56 offen sc1
    s_cmp_lt_u32 s35, 224
    s_cbranch_scc0 L_a_noclear_f
    s_lshl_b32 s56, s35, 10
    s_add_u32 s56, s56, {WS_F1}
    buffer_store_dwordx4 v[64:67], v68, s[40:43], s56 offen sc1
L_a_noclear_f:
    s_waitcnt vmcnt(0)
L_a_noclear:
    s_cmp_eq_u32 s3, 3
    s_cbranch_scc0 L_a_nogate
    """)
    gates()
    a("L_a_nogate:")
    selectors()
    a(f"""
L_a_barA:
    s_barrier
    """)
    stamp(1)
    a(f"""
    s_cmp_eq_u32 s3, 0
    s_cbranch_scc0 L_a_notw0b
    v_mov_b32 v68, {OOB:#x}
    v_cmp_eq_u32 vcc, 0, v1
    v_cndmask_b32 v68, v68, v54, vcc
    v_mov_b32 v69, s69
    {"s_nop 0" if x_noflag else "buffer_atomic_add v69, v68, s[64:67], 0 offen sc1"}
    """)
    tau_fg()
    a(f"""
L_a_notw0b:
    s_cmp_eq_u32 s3, 1
    s_cbranch_scc0 L_a_notw1
    s_cmp_lt_u32 s35, 224
    s_cbranch_scc0 L_a_notw1
    s_and_b32 s57, s35, 7
    s_mul_i32 s57, s57, 80
    v_mad_u32_u24 v64, v2, 20, s57
    v_lshrrev_b32 v6, 3, v3
    v_mul_u32_u24 v6, 1280, v6
    v_lshl_add_u32 v65, v64, 1, v6       ; x offset
    v_mul_u32_u24 v64, 3456, v64
    s_lshr_b32 s57, s35, 3               ; m*14 + cb
    s_cmp_ge_u32 s57, 14
    s_cselect_b32 s36, s18, s16
    s_cselect_b32 s37, s19, s17
    s_cselect_b32 s56, 14, 0
    s_sub_u32 s57, s57, s56
    s_lshl_b32 s57, s57, 8               ; cb*256
    s_mov_b32 s38, 2211840
    s_mov_b32 s39, 0x20000
    v_lshl_add_u32 v66, v3, 4, s57
    v_add_u32 v64, v64, v66
    s_mov_b32 s48, 0
    s_movk_i32 s49, 3456
    """)
    for k in range(5): a(f"buffer_load_dwordx2 v[{44+2*k}:{45+2*k}], v65, s[44:47], 0 offen offset:{8*k}")
    for t in range(20):
        a(f"buffer_load_dwordx4 {wreg(t)}, v64, s[36:39], s48 offen{WF}")
        if t < 19: a("s_add_u32 s48, s48, s49")
    slot_offset()
    a(f"""
    s_lshl_b32 s57, s35, 10
    s_add_u32 s57, s57, {WS_F1}
    s_waitcnt vmcnt(20)
    """)
    tile20()
    for k in range(4): a(f"v_min_u32 v{24+k}, 0xfffffffe, v{24+k}")
    a(f"""
    buffer_store_dwordx4 v[24:27], v7, s[40:43], s57 offen sc1
L_a_notw1:
    """)
    ts(1)
    a(f"""
    v_mov_b32 v72, 0
    ds_read_b128 v[64:67], v72 offset:{L_G}
    s_waitcnt lgkmcnt(0)
    v_readfirstlane_b32 s62, v64
    v_readfirstlane_b32 s63, v65
    v_readfirstlane_b32 s50, v66
    v_readfirstlane_b32 s51, v67
    """)
    if opt_h:
        srd(36, 12, 13, 5242880)
        a(f"""
    s_lshl_b32 s56, s30, 7
    s_lshl_b32 s57, s32, 5
    s_add_u32 s56, s56, s57
    s_lshl_b32 s57, s3, 3
    s_add_u32 s56, s56, s57
    v_lshl_add_u32 v4, v2, 1, s56        ; row
    v_mul_u32_u24 v4, 1280, v4
    v_lshl_add_u32 v4, v3, 4, v4
    s_movk_i32 s48, 1280
    """)
        for rg in range(2):
            for cb in range(5):
                a(f"buffer_load_dwordx4 {wreg(rg*5+cb)}, v4, s[36:39], {'0' if rg == 0 else 's48'} offen offset:{cb*256}{WOF}")
    else:
        srd(36, 12, 13, 5242880)
        a(f"""
    s_lshl_b32 s56, s30, 7
    s_lshl_b32 s57, s3, 5
    s_add_u32 s56, s56, s57
    v_lshl_add_u32 v4, v2, 3, s56        ; row = h*128 + 32v + 8g
    v_mul_u32_u24 v4, 1280, v4
    v_lshl_add_u32 v4, v3, 4, v4
    """)
        for rg in range(8):
            a(f"s_movk_i32 s48, {rg*1280}")
            for cb in range(5):
                if rg*5+cb >= wo_n: continue
                a(f"buffer_load_dwordx4 {wreg(rg*5+cb)}, v4, s[36:39], s48 offen offset:{cb*256}{WOF}")
                if wo_pace and (rg*5+cb) >= wo_pace-1: a(f"s_waitcnt vmcnt({wo_pace-1})")
    stamp(2)
    srd(36, 20, 21, 1728*1280)
    a(f"""
    s_cmp_lt_u32 s61, 108
    s_cbranch_scc0 L_a_nowd
    s_lshl_b32 s56, s61, 4
    s_lshl_b32 s57, s3, 2
    s_add_u32 s56, s56, s57
    v_add_u32 v4, s56, v2
    v_mul_u32_u24 v4, 1280, v4
    v_lshl_add_u32 v4, v3, 4, v4
    """)
    for cb in range(5): a(f"buffer_load_dwordx4 v[{64+4*cb}:{67+4*cb}], v4, s[36:39], 0 offen offset:{cb*256}{WDF}")
    a("L_a_nowd:")
    ts(2)
    if x_noflag or x_nocheck & 1: a("s_branch L_a_all_done")
    if ldsconf: a(f"""
    s_cmp_eq_u32 s3, 0
    s_cbranch_scc1 L_a_all0
    v_mov_b32 v87, 0
    s_mov_b32 s49, 0
L_a_conf:
    ds_read_b32 v88, v87 offset:{L_G+16}
    s_add_u32 s49, s49, 1
    s_waitcnt lgkmcnt(0)
    v_readfirstlane_b32 s56, v88
    s_cmp_ge_u32 s49, {spin_max*16}
    s_cbranch_scc1 L_a_all_done
    s_cmp_lg_u32 s56, 0
    s_cbranch_scc1 L_a_all_done
    s_sleep 4
    s_branch L_a_conf
L_a_all0:
    """)
    a(f"""
    v_and_b32 v87, 31, v1
    v_mul_u32_u24 v87, {cstride}, v87
    v_mov_b32 v86, 0x80000
    s_mov_b32 s49, 0
L_a_all:
    buffer_load_dword v88, v87, s[64:67], 0 offen sc1
    s_add_u32 s49, s49, 1
    s_waitcnt vmcnt(0)
    v_cmp_gt_u32 vcc, v86, v88
    s_cmp_ge_u32 s49, {spin_max}
    s_cbranch_scc1 L_a_all_ok
    s_cbranch_vccz L_a_all_ok
    s_sleep 64
    s_branch L_a_all
L_a_all_ok:
    """)
    if ldsconf: a(f"""
    v_mov_b32 v87, 0
    v_mov_b32 v88, 1
    ds_write_b32 v87, v88 offset:{L_G+16}
    """)
    a(f"""
L_a_all_done:
    """)
    if stamps: a("s_mov_b32 s95, s49")
    ts(3)
    if stamps: a("v_writelane_b32 v63, s95, 10")
    for k in range(20): a(f"v_mov_b32 v{24+k}, 0")
    a(f"""
    s_cmp_lt_u32 s61, 108
    s_cbranch_scc0 L_a_noffn2
    s_lshr_b32 s56, s61, 3               ; cb = f >> 7
    s_lshl_b32 s56, s56, 13
    s_lshl_b32 s57, s31, 9
    s_add_u32 s56, s56, s57
    s_and_b32 s57, s61, 7
    s_lshl_b32 s57, s57, 6
    s_add_u32 s56, s56, s57
    s_lshl_b32 s57, s3, 4
    s_add_u32 s56, s56, s57
    s_add_u32 s56, s56, {WS_F1}          ; + (16 (fg&7) + 4v)*4
    v_and_b32 v86, 7, v3
    v_lshlrev_b32 v86, 10, v86           ; rb*1024
    v_lshrrev_b32 v87, 3, v3
    v_mul_u32_u24 v87, {14*8*1024}, v87  ; matrix
    v_add_u32 v86, v86, v87
    v_lshl_add_u32 v86, v2, 2, v86       ; + g*4
    v_mov_b32 v44, 0
    s_mov_b32 s49, 0
L_a_f1:
    buffer_load_dword v88, v86, s[40:43], s56 offen sc1
    s_add_u32 s49, s49, 1
    s_waitcnt vmcnt(0)
    v_cmp_eq_u32 vcc, -1, v88
    s_cmp_ge_u32 s49, {spin_max}
    s_cbranch_scc1 L_a_f1_done
    s_cbranch_vccz L_a_f1_done
    s_sleep 16
    s_branch L_a_f1
L_a_f1_done:
    """)
    if stamps: a("s_mov_b32 s95, s49")
    ts(4)
    if stamps: a("v_writelane_b32 v63, s95, 11")
    a(f"""
    v_add_f32_dpp v88, v88, v88 quad_perm:[1,0,3,2] {FULL}
    v_add_f32_dpp v88, v88, v88 quad_perm:[2,3,0,1] {FULL}
    v_add_f32_dpp v88, v88, v88 row_half_mirror {FULL}
    v_mov_b32_dpp v89, v88 row_ror:8 {FULL}
    """)
    if mimic: rbf(88); rbf(89)
    a(f"""
    v_mul_f32 v90, {f2u(-LOG2E):#x}, v88
    v_exp_f32 v90, v90
    v_add_f32 v90, 1.0, v90
    v_rcp_f32 v90, v90
    v_mul_f32 v90, v90, v88
    """)
    if mimic: rbf(90)
    a(f"""
    v_mul_f32 v90, v90, v89
    s_mov_b32 exec_lo, 0x00ff00ff
    s_mov_b32 exec_hi, 0x00ff00ff
    v_cvt_pk_bf16_f32 v44, v90, v90
    s_mov_b64 exec, -1
    """)
    perms(16, 44, 8)
    for cb in range(5): mfma(24+4*cb, 16, f"v[{64+4*cb}:{67+4*cb}]")
    a("s_cmp_eq_u32 s31, 0\n s_cselect_b32 s56, s50, s51")
    for k in range(20): a(f"v_mul_f32 v{24+k}, s56, v{24+k}")
    a("L_a_noffn2:")
    ts(5)
    if opt_h:
        a(f"""
    s_cmp_eq_u32 s31, 0
    s_cselect_b32 s68, s62, s63
    s_lshl_b32 s54, s33, 13
    s_add_u32 s54, s54, {WS_O}
    s_lshl_b32 s55, s32, 7
    s_add_u32 s54, s54, s55
    s_lshl_b32 s55, s3, 5
    s_add_u32 s54, s54, s55              ; + (32 split + 8 v)*4
    v_lshlrev_b32 v6, 9, v3
    v_lshl_add_u32 v6, v2, 3, v6         ; + 2g*4
    v_add_u32 v6, s54, v6
    v_mov_b32 v44, 0
    s_mul_i32 s54, s3, 2560
    v_lshlrev_b32 v7, 5, v3
    v_lshl_add_u32 v7, v2, 4, v7
    v_add_u32 v7, s54, v7
    s_waitcnt vmcnt(0)
    """)
    else:
        a(f"""
    s_cmp_eq_u32 s31, 0
    s_cselect_b32 s68, s62, s63
    s_lshl_b32 s54, s3, 7
    v_lshl_add_u32 v6, v2, 5, s54
    v_mov_b32 v44, 0x0c0c0c0c
    v_cmp_gt_u32 vcc, 8, v3
    v_cndmask_b32 v48, v44, v8, vcc
    v_cndmask_b32 v49, v44, v9, vcc
    v_cndmask_b32 v50, v44, v10, vcc
    v_cndmask_b32 v51, v44, v11, vcc
    v_cndmask_b32 v52, v44, v12, vcc
    v_cndmask_b32 v53, v44, v13, vcc
    v_cndmask_b32 v54, v44, v14, vcc
    v_cndmask_b32 v55, v44, v15, vcc
    s_mul_i32 s54, s3, 2560
    v_lshlrev_b32 v7, 5, v3
    v_lshl_add_u32 v7, v2, 4, v7
    v_add_u32 v7, s54, v7
    s_waitcnt vmcnt(0)
    """)
    stamp(3)
    a("s_barrier")
    stamp(4)
    if opt_h:
        a(f"""
    s_mov_b32 s49, 0
L_a_o:
    buffer_load_dwordx2 v[64:65], v6, s[40:43], 0 offen sc1
    s_add_u32 s49, s49, 1
    s_waitcnt vmcnt(0)
    v_max_u32 v66, v64, v65
    v_cmp_eq_u32 vcc, -1, v66
    s_cmp_ge_u32 s49, {spin_max}
    s_cbranch_scc1 L_a_o_done
    s_cbranch_vccnz L_a_o
L_a_o_done:
    """)
        for rr in (8, 4, 2, 1):
            a(f"v_add_f32_dpp v64, v64, v64 row_ror:{rr} {FULL}\n v_add_f32_dpp v65, v65, v65 row_ror:{rr} {FULL}")
        a(f"""
    s_mov_b32 exec_lo, 0x00ff00ff
    s_mov_b32 exec_hi, 0x00ff00ff
    v_cvt_pk_bf16_f32 v44, v64, v65
    s_mov_b64 exec, -1
    """)
        perms(16, 44, 8)
        perms(20, 44, 12)
        for cb in range(5): mfma(24+4*cb, 16, wreg(cb))
        for cb in range(5): mfma(24+4*cb, 20, wreg(5+cb))
    else:
        for hh in range(2):
            for w in range(4):
                a(f"ds_read_b128 v[{64+8*w+4*hh}:{67+8*w+4*hh}], v6 offset:{L_OP+512*w+16*hh}")
        def osum(k0):
            for k in range(k0, k0+4): a(f"v_add_f32 v{64+k}, v{64+k}, v{72+k}\n v_add_f32 v{80+k}, v{80+k}, v{88+k}")
            for k in range(k0, k0+4): a(f"v_add_f32 v{64+k}, v{64+k}, v{80+k}")
            for r in range(k0//2, k0//2+2): a(f"v_cvt_pk_bf16_f32 v{44+r}, v{64+2*r}, v{65+2*r}")
        def pm(rg, r):
            A = 16 + 4*(rg & 1)
            a(f"v_perm_b32 v{A+r}, v{44+(rg >> 1)}, v{44+(rg >> 1)}, v{48+4*(rg & 1)+r}")
        lgkm(4)
        osum(0)
        for r in range(4): pm(0, r)
        extra = []
        for rg in range(8):
            A = 16 + 4*(rg & 1)
            for cb in range(5):
                mfma(24+4*cb, A, wreg(rg*5+cb))
                if rg == 1 and cb == 0:
                    lgkm(0); osum(4)
                if rg < 7 and cb < 4: pm(rg+1, cb)
    a("s_mov_b32 exec_hi, 0")
    for cb in range(5): a(f"ds_write_b128 v7, v[{24+4*cb}:{27+4*cb}] offset:{L_YP+cb*512}")
    a(f"""
    s_mov_b32 exec_hi, -1
    s_waitcnt lgkmcnt(0)
    s_barrier
    s_branch L_pub
    """)
    a(f"""
L_stream:
    """)
    if prio: a(f"s_setprio {prio}")
    if stamps: a("s_memtime s[88:89]")
    a(f"""
    s_sub_u32 s57, s3, 4
    s_lshl_b32 s56, s33, 21
    s_lshl_b32 s58, s32, 19
    s_add_u32 s56, s56, s58
    v_lshlrev_b32 v4, 4, v1          ; lane*16
    s_lshr_b32 s58, s2, 3
    s_mul_i32 s58, s58, {ra}
    s_and_b32 s59, s2, 7
    s_mul_i32 s59, s59, {rx}
    s_add_u32 s58, s58, s59
    s_lshl_b32 s58, s58, {ru}
    s_lshl_b32 s59, s57, 12
    s_add_u32 s48, s58, s59
    s_and_b32 s48, s48, 0x7ffff
    v_mov_b32 v14, {OOB:#x}
    s_lshl_b32 s59, s34, 2
    s_add_u32 s59, s59, s57
    s_lshl_b32 s59, s59, 7
    s_add_u32 s59, s59, {WS_ML}
    v_lshl_add_u32 v47, v1, 3, s59
    v_cmp_gt_u32 vcc, 16, v1
    v_cndmask_b32 v47, v14, v47, vcc
    s_waitcnt lgkmcnt(0)
    s_add_u32 s36, s6, s56
    s_addc_u32 s37, s7, 0
    s_mov_b32 s38, 0x80000
    s_mov_b32 s39, 0x20000
    s_add_u32 s44, s8, s56
    s_addc_u32 s45, s9, 0
    """)
    srd(40, 28, 29, hex(WS_SIZE))
    srd(64, 26, 27, 256)
    if a0: a("s_barrier")
    VF = SF if vflag is None else ((" " + vflag) if vflag else "")
    def sload(s, fl=None):
        a(f"buffer_load_dwordx4 {ring(s)}, v4, s[36:39], s48 offen offset:{(s&3)*1024}{SF if fl is None else fl}")
        if (s & 3) == 3: a("s_add_u32 s48, s48, 0x4000\n s_and_b32 s48, s48, 0x7ffff")
    for s in range(depth):
        if thr and s >= thr: a(f"s_waitcnt vmcnt({thr-1})")
        sload(s)
    a(f"""
    v_and_b32 v32, 1, v3
    v_mov_b32 v33, 0xffff
    v_mov_b32 v34, 0xffff0000
    v_cmp_eq_u32 vcc, 1, v32
    v_cndmask_b32 v33, v33, v34, vcc
    v_lshrrev_b32 v32, 1, v3              ; c>>1
    """)
    for r in range(4):
        a(f"v_cmp_eq_u32 vcc, {r}, v32\n v_cndmask_b32 v{16+r}, 0, v33, vcc")
    Q = 80
    a(f"""
    s_mov_b32 s50, 0xaaaaaaaa
    s_mov_b32 s51, 0xaaaaaaaa
    s_mov_b32 s52, 0xcccccccc
    s_mov_b32 s53, 0xcccccccc
    v_lshlrev_b32 v46, 4, v3
    s_barrier
    """)
    stamp(1)
    a(f"""
    ds_read_b128 v[{Q}:{Q+3}], v46 offset:{L_QB}
    s_lshl_b32 s59, s31, 2
    v_mov_b32 v56, s59
    ds_read_b32 v56, v56 offset:{L_G}
    s_mov_b32 s49, 0
    s_waitcnt lgkmcnt(0)
L_kloop:
    """)
    Pa, Pb, Qe, Qo, T0, T1, t1, t2 = 32, 33, 36, 37, 40, 41, 42, 43
    R = [38, 39, 34, 35]
    U = [44, 45]
    ngroups = depth//16
    assert depth in (16, 32)
    for grp in range(ngroups):
        for k in range(8):
            for half, P in ((0, Pa), (1, Pb)):
                s = grp*16 + 2*k + half
                if not thr: a(f"s_waitcnt vmcnt({depth-1})")
                a(f"v_mov_b32 v{P}, 0")
                for r in range(4): a(f"v_dot2c_f32_bf16 v{P}, {ringr(s, r)}, v{Q+r}")
                if thr: a(f"s_waitcnt vmcnt({thr-1})")
                sload(s)
            Qx = Qe if k % 2 == 0 else Qo
            a(f"v_add_f32_dpp v{Qx}, v{Pa}, v{Pa} row_ror:8 row_mask:0xf bank_mask:0x3")
            a(f"v_add_f32_dpp v{Qx}, v{Pb}, v{Pb} row_ror:8 row_mask:0xf bank_mask:0xc")
            if k % 2 == 1:
                Rx = R[k >> 1]
                a(f"v_add_f32_dpp v{Rx}, v{Qe}, v{Qe} row_shl:4 row_mask:0xf bank_mask:0x5")
                a(f"v_add_f32_dpp v{Rx}, v{Qo}, v{Qo} row_shr:4 row_mask:0xf bank_mask:0xa")
            if k in (3, 7):
                Re, Ro = (R[0], R[1]) if k == 3 else (R[2], R[3])
                T = T0 if k == 3 else T1
                a(f"v_add_f32_dpp v{t1}, v{Re}, v{Re} quad_perm:[2,3,0,1] {FULL}")
                a(f"v_add_f32_dpp v{t2}, v{Ro}, v{Ro} quad_perm:[2,3,0,1] {FULL}")
                a(f"v_cndmask_b32 v{T}, v{t1}, v{t2}, s[52:53]")
        a(f"v_add_f32_dpp v{t1}, v{T0}, v{T0} quad_perm:[1,0,3,2] {FULL}")
        a(f"v_add_f32_dpp v{t2}, v{T1}, v{T1} quad_perm:[1,0,3,2] {FULL}")
        a(f"v_cndmask_b32 v{U[grp]}, v{t1}, v{t2}, s[50:51]")
    niter = 128//depth
    for k in range(8-ngroups): a(f"v_mov_b32 v{8+k}, v{8+k+ngroups}")
    for gidx in range(ngroups): a(f"v_mov_b32 v{8+8-ngroups+gidx}, v{U[gidx]}")
    a(f"""
    """)
    ts_dyn(16)
    a(f"""
    s_add_u32 s49, s49, 1
    s_cmp_eq_u32 s49, {niter-1}
    s_cselect_b32 s36, s44, s36
    s_cselect_b32 s37, s45, s37
    s_cmp_lt_u32 s49, {niter}
    s_cbranch_scc1 L_kloop
    """)
    stamp(2)
    c1 = f2u(128**-0.5*LOG2E)
    a(f"""
    v_max3_f32 v32, v8, v9, v10
    v_max3_f32 v32, v32, v11, v12
    v_max3_f32 v32, v32, v13, v14
    v_max_f32 v32, v32, v15
    """)
    allreduce("v_max_f32", 32)
    a(f"v_mov_b32 v33, {c1:#x}\n v_mul_f32 v32, v33, v32")
    for k in range(8): a(f"v_fma_f32 v{8+k}, v{8+k}, v33, -v32")
    for k in range(8): a(f"v_exp_f32 v{8+k}, v{8+k}")
    a(f"""
    v_add_f32 v34, v8, v9
    v_add_f32 v35, v10, v11
    v_add_f32 v36, v12, v13
    v_add_f32 v37, v14, v15
    v_add_f32 v34, v34, v35
    v_add_f32 v36, v36, v37
    v_add_f32 v34, v34, v36
    """)
    allreduce("v_add_f32", 34)
    for k in range(8): a(f"v_cvt_pk_bf16_f32 v{8+k}, v{8+k}, v{8+k}")
    a(f"""
    v_min_u32 v36, 0xfffffffe, v32
    v_min_u32 v37, 0xfffffffe, v34
    {"s_nop 0" if x_noml else "buffer_store_dwordx2 v[36:37], v47, s[40:43], 0 offen sc1"}
    v_mov_b32 v28, 0
    v_mov_b32 v29, 0
    v_mov_b32 v30, 0
    v_mov_b32 v31, 0
    """)
    if opt_h: a(f"""
    s_lshl_b32 s58, s34, 2
    s_add_u32 s58, s58, s57
    s_lshl_b32 s58, s58, 9
    s_add_u32 s58, s58, {WS_O}
    v_lshlrev_b32 v46, 5, v3             ; c*32
    v_lshl_add_u32 v46, v2, 4, v46       ; + lg*16
    v_add_u32 v46, s58, v46
    v_mov_b32 v55, {OOB:#x}
    v_cmp_gt_u32 vcc, 32, v1
    v_cndmask_b32 v46, v55, v46, vcc
    """)
    else: a(f"""
    s_lshl_b32 s58, s57, 9
    v_lshlrev_b32 v46, 5, v3             ; c*32
    v_lshl_add_u32 v46, v2, 4, v46       ; + lg*16
    v_add_u32 v46, s58, v46
    """)
    a(f"""
    v_and_b32 v48, 31, v1
    v_mul_u32_u24 v48, {cstride}, v48
    v_mov_b32 v49, 0x80000
    s_lshl_b32 s58, s33, 11
    s_add_u32 s58, s58, {WS_ML}
    v_lshl_add_u32 v51, v3, 7, s58
    s_mov_b32 s49, 0
L_vloop:
    """)
    def vpos(s, last):
        t = s & 15
        c = 4*rev2(t & 3) + rev2(t >> 2)
        P = 8 + (s >> 4)
        A = 20 + 4*(s & 1)
        a(f"s_waitcnt vmcnt({depth-1-s if last else depth-1})")
        for r in range(4): a(f"v_and_b32_dpp v{A+r}, v{P}, v{16+r} row_newbcast:{c} {FULL}")
        mfma(28, A, ring(s))
        if not last:
            if vthr: a(f"s_waitcnt vmcnt({vthr-1})")
            sload(s, VF)
    for s_ in range(depth): vpos(s_, False)
    for k in range(8-ngroups): a(f"v_mov_b32 v{8+k}, v{8+k+ngroups}")
    ts_dyn(32)
    i_flag, i_ml = (niter-4, niter-3) if not x_noml else (99, 99)
    if (x_noflag or x_nocheck & 2) and not x_noml: i_flag = 99
    if ldsconf and not (x_noflag or x_nocheck & 2): a(f"""
    s_cmp_eq_u32 s49, {i_ml}
    s_cbranch_scc0 L_v_n2
    s_mov_b32 s59, 0
    v_mov_b32 v50, 0
L_v_fl:
    ds_read_b32 v49, v50 offset:{L_G+16}
    s_add_u32 s59, s59, 1
    s_waitcnt lgkmcnt(0)
    v_readfirstlane_b32 s58, v49
    s_cmp_ge_u32 s59, {spin_max*16}
    s_cbranch_scc1 L_v_fl_done
    s_cmp_lg_u32 s58, 0
    s_cbranch_scc1 L_v_fl_done
    s_sleep 4
    s_branch L_v_fl
    """)
    else:
        a(f"""
    s_cmp_eq_u32 s49, {i_flag}
    s_cbranch_scc0 L_v_n1
    buffer_load_dword v50, v48, s[64:67], 0 offen sc1
L_v_n1:
    s_cmp_eq_u32 s49, {i_ml}
    s_cbranch_scc0 L_v_n2
    s_mov_b32 s59, {spin_max if (x_noflag or x_nocheck & 2) else 0}
    s_waitcnt vmcnt({depth})
L_v_fl:
    v_cmp_gt_u32 vcc, v49, v50
    s_add_u32 s59, s59, 1
    s_cmp_ge_u32 s59, {spin_max}
    s_cbranch_scc1 L_v_fl_done
    s_cbranch_vccz L_v_fl_done
    s_sleep 32
    buffer_load_dword v50, v48, s[64:67], 0 offen sc1
    s_waitcnt vmcnt(0)
    s_branch L_v_fl
    """)
    a(f"""
L_v_fl_done:
    buffer_load_dwordx2 v[52:53], v51, s[40:43], 0 offen sc1
L_v_n2:
    s_add_u32 s49, s49, 1
    s_cmp_lt_u32 s49, {niter-1}
    s_cbranch_scc1 L_vloop
    s_mov_b32 s59, {spin_max if x_noml else 0}
    s_waitcnt vmcnt({depth})
L_v_ml:
    v_max_u32 v54, v52, v53
    v_cmp_eq_u32 vcc, -1, v54
    s_add_u32 s59, s59, 1
    s_cmp_ge_u32 s59, {spin_max}
    s_cbranch_scc1 L_v_ml_done
    s_cbranch_vccz L_v_ml_done
    s_sleep 8
    buffer_load_dwordx2 v[52:53], v51, s[40:43], 0 offen sc1
    s_waitcnt vmcnt(0)
    s_branch L_v_ml
L_v_ml_done:
    v_mov_b32 v54, v52
    """)
    for rr in (8, 4, 2, 1): a(f"v_max_f32_dpp v54, v54, v54 row_ror:{rr} {FULL}")
    a("v_sub_f32 v52, v52, v54\n v_exp_f32 v52, v52\n v_mul_f32 v53, v52, v53")
    for rr in (8, 4, 2, 1): a(f"v_add_f32_dpp v53, v53, v53 row_ror:{rr} {FULL}")
    a(f"""
    v_rcp_f32 v53, v53
    s_lshl_b32 s59, s32, 2
    s_add_u32 s59, s59, s57
    v_mul_f32 v52, v52, v53
    v_mul_f32 v52, v52, v56
    s_nop 0
    v_readlane_b32 s68, v52, s59
    """)
    for s_ in range(depth): vpos(s_, True)
    ts(35)
    if stamps: a("s_memtime s[90:91]")
    for k in range(4): a(f"v_mul_f32 v{28+k}, s68, v{28+k}")
    if opt_h:
        for k in range(4): a(f"v_min_u32 v{28+k}, 0xfffffffe, v{28+k}")
        a("buffer_store_dwordx4 v[28:31], v46, s[40:43], 0 offen sc1")
        stamp(3)
        a("s_barrier")
    else:
        stamp(3)
        a(f"""
    s_mov_b32 exec_hi, 0
    ds_write_b128 v46, v[28:31] offset:{L_OP}
    s_mov_b32 exec_hi, -1
    s_waitcnt lgkmcnt(0)
    s_barrier
    """)
    stamp(4)
    a("s_barrier\nL_pub:")
    stamp(5)
    a(f"""
    s_cmp_ge_u32 s3, 3
    s_cbranch_scc1 L_nopub
    v_lshlrev_b32 v46, 4, v0
    """)
    for w in range(4): a(f"ds_read_b128 v[{64+4*w}:{67+4*w}], v46 offset:{L_YP+2560*w}")
    a(f"""
    s_mul_i32 s54, s34, 2560
    v_add_u32 v47, s54, v46
    v_mov_b32 v45, {OOB:#x}
    v_cmp_gt_u32 vcc, 160, v0
    v_cndmask_b32 v47, v45, v47, vcc
    s_waitcnt lgkmcnt(0)
    """)
    for k in range(4): a(f"v_add_f32 v{64+k}, v{64+k}, v{68+k}\n v_add_f32 v{72+k}, v{72+k}, v{76+k}")
    for k in range(4): a(f"v_add_f32 v{64+k}, v{64+k}, v{72+k}")
    for k in range(4): a(f"v_min_u32 v{64+k}, 0xfffffffe, v{64+k}")
    a(f"""
    buffer_store_dwordx4 v[64:67], v47, s[40:43], 0 offen sc1
L_nopub:
    """)
    stamp(6)
    a(f"""
    s_cmp_ge_u32 s2, 80
    s_cbranch_scc1 L_fin
    s_cmp_ge_u32 s2, 40
    s_cselect_b32 s54, 1, 0              ; batch
    s_mul_i32 s55, s54, 40
    s_sub_u32 s55, s2, s55
    v_lshrrev_b32 v44, 2, v0             ; i
    v_and_b32 v45, 3, v0                 ; cq
    s_lshl_b32 s56, s55, 6
    v_lshl_add_u32 v45, v45, 4, s56
    s_mul_i32 s56, s54, {128*2560}
    v_mul_u32_u24 v46, 2560, v44
    v_add3_u32 v46, v46, v45, s56        ; Y address
    s_mov_b32 s49, 0
    """)
    if gpipe:
        def chk(r, nxt):
            a(f"""
            s_waitcnt vmcnt(1)
            v_max_u32 v60, v{r}, v{r+1}
            v_max3_u32 v60, v60, v{r+2}, v{r+3}
            v_cmp_eq_u32 vcc, -1, v60
            s_andn2_b64 exec, exec, vcc
            v_mov_b32 v56, v{r}
            v_mov_b32 v57, v{r+1}
            v_mov_b32 v58, v{r+2}
            v_mov_b32 v59, v{r+3}
            s_mov_b64 exec, vcc
            s_cbranch_execz L_g_done
            buffer_load_dwordx4 v[{r}:{r+3}], v46, s[40:43], 0 offen sc1
            """)
        a(f"""
        buffer_load_dwordx4 v[48:51], v46, s[40:43], 0 offen sc1
        s_sleep 2
        buffer_load_dwordx4 v[52:55], v46, s[40:43], 0 offen sc1
L_g:
        """)
        chk(48, 52); chk(52, 48)
        a(f"""
        s_add_u32 s49, s49, 1
        s_cmp_lt_u32 s49, {spin_max}
        s_cbranch_scc1 L_g
        """)
    else:
        a(f"""
L_g:
    buffer_load_dwordx4 v[48:51], v46, s[40:43], 0 offen sc1
    s_add_u32 s49, s49, 1
    s_waitcnt vmcnt(0)
    v_max_u32 v56, v48, v49
    v_max3_u32 v56, v56, v50, v51
    v_cmp_eq_u32 vcc, -1, v56
    s_cmp_ge_u32 s49, {spin_max}
    s_cbranch_scc1 L_g_done
    """)
        if gmask: a("s_and_b64 exec, exec, vcc\n s_cbranch_execnz L_g")
        else: a("s_cbranch_vccnz L_g")
    a(f"""
L_g_done:
    s_mov_b64 exec, -1
    """)
    R = 56 if gpipe else 48
    for rr in (8, 4):
        for k in range(4): a(f"v_add_f32_dpp v{R+k}, v{R+k}, v{R+k} row_ror:{rr} {FULL}")
    a(f"""
    v_lshlrev_b32 v44, 9, v3             ; cq*4*128
    s_lshl_b32 s56, s3, 4
    v_lshl_add_u32 v45, v2, 2, s56       ; (wave*4+row)*4
    v_add_u32 v44, v44, v45
    s_mov_b32 exec_lo, 0x000f000f
    s_mov_b32 exec_hi, 0x000f000f
    """)
    for k in range(4): a(f"ds_write_b32 v44, v{R+k} offset:{L_RP+128*k}")
    a(f"""
    s_mov_b64 exec, -1
    s_waitcnt lgkmcnt(0)
    s_barrier
    s_cmp_eq_u32 s3, 0
    s_cbranch_scc0 L_fin
    v_lshlrev_b32 v44, 5, v1
    ds_read_b128 v[64:67], v44 offset:{L_RP}
    ds_read_b128 v[68:71], v44 offset:{L_RP+16}
    """)
    srd(64, 24, 25, 2560)
    a(f"""
    s_mul_i32 s56, s54, 1280
    s_lshl_b32 s55, s55, 5
    s_add_u32 s56, s56, s55
    v_lshrrev_b32 v45, 2, v1
    v_lshl_add_u32 v45, v45, 1, s56
    v_and_b32 v46, 3, v1
    v_mov_b32 v43, {OOB:#x}
    v_cmp_eq_u32 vcc, 0, v46
    v_cndmask_b32 v45, v43, v45, vcc
    s_waitcnt lgkmcnt(0)
    v_add_f32 v64, v64, v65
    v_add_f32 v66, v66, v67
    v_add_f32 v68, v68, v69
    v_add_f32 v70, v70, v71
    v_add_f32 v64, v64, v66
    v_add_f32 v68, v68, v70
    v_add_f32 v64, v64, v68
    v_add_f32_dpp v64, v64, v64 quad_perm:[1,0,3,2] {FULL}
    v_add_f32_dpp v64, v64, v64 quad_perm:[2,3,0,1] {FULL}
    v_cvt_pk_bf16_f32 v64, v64, v64
    buffer_store_short v64, v45, s[64:67], 0 offen {oflag}
L_fin:
    """)
    if stamps:
        a(f"""
        s_memrealtime s[86:87]
        s_getreg_b32 s54, hwreg(HW_REG_XCC_ID)
        s_waitcnt lgkmcnt(0)
        s_lshl_b32 s55, s2, 3
        s_add_u32 s55, s55, s3
        s_lshl_b32 s55, s55, 6
        s_add_u32 s55, s55, {WS_STAMP}
        s_mov_b32 s40, s28
        s_mov_b32 s41, s29
        s_mov_b32 s42, 0x400000
        s_mov_b32 s43, 0x20000
        v_mov_b32 v48, s72
        v_mov_b32 v49, s74
        v_mov_b32 v50, s76
        v_mov_b32 v51, s78
        v_mov_b32 v52, s80
        v_mov_b32 v53, s82
        v_mov_b32 v54, s84
        v_mov_b32 v55, s86
        v_mov_b32 v56, s54
        v_mov_b32 v45, s55
        v_mov_b32 v43, {OOB:#x}
        v_cmp_eq_u32 vcc, 0, v1
        v_cndmask_b32 v45, v43, v45, vcc
        buffer_store_dwordx4 v[48:51], v45, s[40:43], 0 offen
        buffer_store_dwordx4 v[52:55], v45, s[40:43], 0 offen offset:16
        v_mov_b32 v57, s88
        v_mov_b32 v58, s90
        v_mov_b32 v59, s92
        buffer_store_dwordx4 v[56:59], v45, s[40:43], 0 offen offset:32
        s_lshl_b32 s55, s2, 3
        s_add_u32 s55, s55, s3
        s_lshl_b32 s55, s55, 8
        s_add_u32 s55, s55, {WS_STAMP + 0x40000}
        v_lshl_add_u32 v45, v1, 2, s55
        buffer_store_dword v63, v45, s[40:43], 0 offen
        """)
    a("L_end:\n s_endpgm")
    text, n = hz.fix(a.text())
    return wrap(text, 256, 512, LDS_BYTES, vgpr=256, sgpr=100), n

if __name__ == "__main__":
    from build import build
    import json
    names = []
    for spec in sys.argv[1:]:
        kw = {}
        name, _, rest = spec.partition(":")
        for p in rest.split(","):
            if not p: continue
            k, v = p.split("=")
            kw[k] = v if k in ("sflag", "wflag", "woflag", "vflag", "wdflag", "oflag") else int(v, 0)
        for k in ("sflag", "wflag", "woflag", "vflag", "wdflag", "oflag"):
            if kw.get(k) == "none": kw[k] = ""
            if k in kw: kw[k] = kw[k].replace("+", " ")
        t, n = gen(**kw)
        open(f"work/{name}.s", "w").write(t)
        build(f"work/{name}.s")
        print(name, "nops inserted:", n, "lines:", t.count("\n"))
        names.append(name)
    print(json.dumps(["work/bench.py", "cdna_kernels/cdna_launch.py", "cdna_kernels/cdna_unwritten_srd_check.py", "gated_mix__mha_block_cached__swiglu_ffn__decode_np.py"] + sum([[f"work/{n}.co", f"work/{n}.s"] for n in names], [])))
```

```python
import sys, struct
sys.path.insert(0, "work")
from asmlib import *
import hz

SENT = 0xFFFFFFFF
OOB = 0x7FFF0000
WS_Y = 0
WS_ML = 0x19A000
WS_Q = 0xA2000
WS_F1 = 0xE2000
WS_O = 0x11A000
WS_SIZE = 0x1BA000
WS_STAMP = 0x200000
L_QB, L_G, L_OP, L_YP, L_RP = 0, 1024, 2048, 4096, 0
L_ST = L_YP
LDS_BYTES = 16384
LOG2E = 1.4426950408889634
def f2u(f): return struct.unpack("<I", struct.pack("<f", f))[0]
def rev2(x): return ((x & 1) << 1) | ((x >> 1) & 1)
FULL = "row_mask:0xf bank_mask:0xf"

DESCRIPTION = """;
;
"""

def gen(depth=32, sflag="nt", wflag="nt", woflag=None, stamps=0, spin_max=1 << 16, mimic=1, wo_pace=0, sleep=4, thr=6, vthr=0, wo_n=40, ml_delay=0, ml_sleep=16, hmap=0, ra=8, rx=1, ru=12, x_noflag=0, x_noml=0, x_noffn=0, a0=0, qsleep=0, opt_h=0, gmask=1, tail2=1, late=1, vflag=None, x_noq=0, x_nots=0, x_nocheck=0, ldsconf=1, cstride=8, wdflag=None, gpipe=1, prio=0, oflag='', swaproles=0, pretouch=0, x_nok=0, x_nov=0, x_nosm=0, x_nofinal=0, gsleep=0, x_exit=0):
    a = Asm()
    SF = (" " + sflag) if sflag else ""
    WF = (" " + wflag) if wflag else ""
    WOF = WF if woflag is None else ((" " + woflag) if woflag else "")
    WDF = WF if wdflag is None else ((" " + wdflag) if wdflag else "")
    RING = 256 - depth*4
    def ring(s): return f"v[{RING+4*s}:{RING+4*s+3}]"
    def ringr(s, r): return f"v{RING+4*s+r}"
    W0 = 96
    def wreg(t): return f"v[{W0+4*t}:{W0+4*t+3}]"
    def stamp(k):
        if stamps: a(f"s_memrealtime s[{72+2*k}:{73+2*k}]")
    def xstamp(k):
        if stamps: a(f"s_memrealtime s[{88+2*k}:{89+2*k}]")
    SR = [63]
    def ts(idx):
        if stamps: a(f"s_memrealtime s[96:97]\n s_waitcnt lgkmcnt(0)\n v_writelane_b32 v{SR[0]}, s96, {idx}")
    def ts_dyn(base):
        if stamps and not x_nots: a(f"s_memrealtime s[96:97]\n s_add_u32 s94, s49, {base}\n s_waitcnt lgkmcnt(0)\n s_mov_b32 m0, s94\n v_writelane_b32 v{SR[0]}, s96, m0")
    def lgkm(n): a(f"s_waitcnt lgkmcnt({0 if stamps else n})")
    def allreduce(op, v):
        for rr in (8, 4, 2, 1): a(f"{op}_dpp v{v}, v{v}, v{v} row_ror:{rr} {FULL}")
        a(f"v_readlane_b32 s54, v{v}, 0\n v_readlane_b32 s55, v{v}, 16\n v_readlane_b32 s56, v{v}, 32\n v_readlane_b32 s58, v{v}, 48")
        a(f"v_mov_b32 v{v}, s54\n {op} v{v}, s55, v{v}\n {op} v{v}, s56, v{v}\n {op} v{v}, s58, v{v}")
    def rbf(v):
        a(f"v_cvt_pk_bf16_f32 v{v}, v{v}, v{v}\n v_lshlrev_b32 v{v}, 16, v{v}")
    def srd(base, lo, hi, size):
        a(f"s_mov_b32 s{base}, s{lo}\n s_mov_b32 s{base+1}, s{hi}\n s_mov_b32 s{base+2}, {size}\n s_mov_b32 s{base+3}, 0x20000")
    def mfma(d, A, B, C=None):
        a(f"v_mfma_f32_16x16x32_bf16 v[{d}:{d+3}], v[{A}:{A+3}], {B}, " + (C if C is not None else f"v[{d}:{d+3}]"))
    def perms(A, X, sel):
        for r in range(4): a(f"v_perm_b32 v{A+r}, v{X}, v{X}, v{sel+r}")
    a(f"""
    s_cmp_ge_u32 s2, 256
    s_cbranch_scc1 L_end
    s_load_dwordx16 s[4:19], s[0:1], 0
    s_load_dwordx8 s[20:27], s[0:1], 64
    s_load_dwordx2 s[28:29], s[0:1], 96
    """)
    stamp(0)
    if stamps: a("v_mov_b32 v63, 0")
    if swaproles: a("v_xor_b32 v0, 0x100, v0")
    a(f"""
    v_lshrrev_b32 v2, 6, v0
    v_and_b32 v1, 63, v0
    s_and_b32 s54, s2, 7             ; x
    v_readfirstlane_b32 s3, v2       ; wave
    s_lshr_b32 s55, s2, 3            ; j
    s_and_b32 s30, s55, 3
    """)
    if hmap == 0: a("s_lshl_b32 s56, s54, 2\n s_add_u32 s30, s30, s56          ; h = 4x + (j&3)")
    else: a("s_lshl_b32 s30, s30, 3\n s_add_u32 s30, s30, s54          ; h = x + 8 (j&3)")
    a(f"""
    s_bfe_u32 s31, s55, 0x10002      ; b = (j>>2)&1
    s_lshr_b32 s32, s55, 3           ; split
    s_lshl_b32 s33, s31, 5
    s_add_u32 s33, s33, s30          ; bh
    s_lshl_b32 s34, s33, 2
    s_add_u32 s34, s34, s32
    v_and_b32 v3, 15, v1             ; c
    v_lshrrev_b32 v2, 4, v1          ; g
    s_cmp_ge_u32 s3, 4
    s_cbranch_scc1 L_stream
    """)
    def selectors():
        a(f"""
        v_and_b32 v70, 1, v3
        v_mov_b32 v71, 0x0c0c0100
        v_mov_b32 v72, 0x01000c0c
        v_mov_b32 v73, 0x0c0c0302
        v_mov_b32 v74, 0x03020c0c
        v_cmp_eq_u32 vcc, 1, v70
        v_cndmask_b32 v71, v71, v72, vcc
        v_cndmask_b32 v73, v73, v74, vcc
        v_mov_b32 v75, 0x0c0c0c0c
        v_bfe_u32 v70, v3, 1, 2
        """)
        for r in range(4):
            a(f"v_cmp_eq_u32 vcc, {r}, v70\n v_cndmask_b32 v{8+r}, v75, v71, vcc\n v_cndmask_b32 v{12+r}, v75, v73, vcc")
    def tile20(extra=0):
        for t in range(20):
            A = 16 + 4*(t & 1)
            perms(A, 44 + (t >> 1), 8 + 4*(t & 1))
            a(f"s_waitcnt vmcnt({19-t+extra})")
            mfma(24, A, wreg(t), "0" if t == 0 else None)
    def tau_fg():
        a(f"""
        s_and_b32 s54, s2, 7                 ; x
        s_lshr_b32 s55, s2, 3                ; j
        s_lshr_b32 s56, s54, 1               ; x>>1
        s_mul_i32 s57, s56, 24
        s_add_u32 s57, s57, 128
        s_add_u32 s57, s57, s55
        s_cmp_ge_u32 s55, 24
        s_cselect_b32 s57, 999, s57          ; odd x
        s_lshl_b32 s35, s56, 5
        s_add_u32 s35, s35, s55              ; even x
        s_bitcmp1_b32 s54, 0
        s_cselect_b32 s35, s57, s35          ; tau: gate / up tile (>= 224: none)
        s_lshl_b32 s57, s32, 2
        s_and_b32 s59, s55, 3
        s_add_u32 s57, s57, s59              ; jb
        s_mul_i32 s59, s56, 11
        s_add_u32 s59, s59, s57
        s_add_u32 s59, s59, 59               ; 64 + 11*(x>>1) + jb - 5
        s_cmp_lt_u32 s57, 5
        s_cselect_b32 s59, 999, s59
        s_lshl_b32 s61, s56, 4
        s_add_u32 s61, s61, s57
        s_bitcmp1_b32 s54, 0
        s_cselect_b32 s61, s59, s61          ; fg: w_down row group (>= 108: none)
        """)
        if x_noffn: a("s_movk_i32 s35, 999\n s_movk_i32 s61, 999")
        a(f"""
        """)
    def gates():
        srd(36, 22, 23, 1280)
        a(f"""
    v_lshlrev_b32 v72, 5, v1
    v_mov_b32 v73, {OOB:#x}
    v_cmp_gt_u32 vcc, 40, v1
    v_cndmask_b32 v72, v73, v72, vcc
    buffer_load_dwordx4 v[44:47], v72, s[44:47], 0 offen
    buffer_load_dwordx4 v[48:51], v72, s[44:47], 0 offen offset:16
    buffer_load_dwordx4 v[52:55], v72, s[44:47], 0 offen offset:1280
    buffer_load_dwordx4 v[56:59], v72, s[44:47], 0 offen offset:1296
    buffer_load_dwordx4 v[64:67], v72, s[36:39], 0 offen
    buffer_load_dwordx4 v[68:71], v72, s[36:39], 0 offen offset:16
    """)
        a(f"""
    s_waitcnt vmcnt(0)
    v_mov_b32 v74, 0
    v_mov_b32 v75, 0
    """)
        if mimic:
            for bb in range(2):
                for k in range(8):
                    x = 44 + 8*bb + k; g_ = 64 + k
                    a(f"""
                v_lshlrev_b32 v76, 16, v{x}
                v_lshlrev_b32 v77, 16, v{g_}
                v_and_b32 v78, 0xffff0000, v{x}
                v_and_b32 v79, 0xffff0000, v{g_}
                v_mul_f32 v76, v76, v77
                v_mul_f32 v78, v78, v79
                v_cvt_pk_bf16_f32 v76, v76, v78
                v_lshlrev_b32 v77, 16, v76
                v_and_b32 v76, 0xffff0000, v76
                v_add_f32 v{74+bb}, v{74+bb}, v77
                v_add_f32 v{74+bb}, v{74+bb}, v76
                """)
        else:
            for k in range(8):
                a(f"v_dot2c_f32_bf16 v74, v{44+k}, v{64+k}\n v_dot2c_f32_bf16 v75, v{52+k}, v{64+k}")
        allreduce("v_add_f32", 74)
        allreduce("v_add_f32", 75)
        for bb in range(2):
            z = 74 + bb
            if mimic: rbf(z)
            a(f"""
        v_mul_f32 v{z}, {f2u(-LOG2E):#x}, v{z}
        v_exp_f32 v{z}, v{z}
        v_add_f32 v{z}, 1.0, v{z}
        v_rcp_f32 v{z}, v{z}
        """)
            if mimic: rbf(z)
            a(f"v_sub_f32 v{76+bb}, 1.0, v{z}")
            if mimic: rbf(76+bb)
        a(f"""
        v_mov_b32 v72, 0
        ds_write_b128 v72, v[74:77] offset:{L_G}
        ds_write_b32 v72, v72 offset:{L_G+16}
        s_waitcnt lgkmcnt(0)
        """)
    def slot_offset():
        a(f"""
        v_lshrrev_b32 v7, 1, v2
        v_lshlrev_b32 v7, 9, v7              ; bb*512
        v_and_b32 v5, 1, v2
        v_lshl_add_u32 v7, v5, 4, v7
        v_lshl_add_u32 v7, v3, 5, v7
        """)
    a(f"""
    s_lshl_b32 s57, s31, 2
    s_add_u32 s57, s57, s32
    s_lshl_b32 s60, s30, 3
    s_add_u32 s60, s60, s57
    s_cmp_eq_u32 s3, {99 if x_noq else 0}
    s_cbranch_scc0 L_a_notw0
    s_mul_i32 s57, s57, 80
    v_mad_u32_u24 v4, v2, 20, s57
    v_lshrrev_b32 v6, 3, v3
    v_mul_u32_u24 v6, 1280, v6           ; bb*1280
    v_lshl_add_u32 v5, v4, 1, v6         ; x offset
    s_lshl_b32 s57, s30, 8
    v_lshlrev_b32 v4, 13, v4
    v_lshl_add_u32 v7, v3, 4, s57
    v_add_u32 v4, v4, v7
    s_mov_b32 s48, 0
    s_movk_i32 s49, 0x2000
    """)
    a("v_mov_b32 v55, v5")
    slot_offset()
    a(f"""
    v_mov_b32 v5, v55
    s_lshl_b32 s58, s60, 10
    s_add_u32 s58, s58, {WS_Q}
    s_lshl_b32 s56, s30, 13
    s_lshl_b32 s57, s31, 9
    s_add_u32 s56, s56, s57
    s_add_u32 s56, s56, {WS_Q}
    s_add_u32 s57, s56, 4096
    v_lshlrev_b32 v6, 3, v1
    s_waitcnt lgkmcnt(0)
    """)
    srd(40, 28, 29, hex(WS_SIZE))
    a(f"""
    buffer_load_dwordx4 v[28:31], v7, s[40:43], s58 offen sc1
    """)
    for rb in range(8):
        a(f"buffer_load_dwordx2 v[{80+2*rb}:{81+2*rb}], v6, s[40:43], {'s56' if rb < 4 else 's57'} offen offset:{(rb & 3)*1024} sc1")
    srd(44, 4, 5, 2560)
    srd(36, 10, 11, 5242880)
    for k in range(5): a(f"buffer_load_dwordx2 v[{44+2*k}:{45+2*k}], v5, s[44:47], 0 offen offset:{8*k}")
    for t in range(20):
        a(f"buffer_load_dwordx4 {wreg(t)}, v4, s[36:39], s48 offen{WF}")
        if t < 19: a("s_add_u32 s48, s48, s49")
    if a0: a("s_barrier")
    selectors()
    srd(64, 26, 27, 256)
    a(f"""
    s_mul_i32 s59, s30, {cstride}
    v_mov_b32 v54, s59
    s_mov_b32 s69, 0x10001
    s_waitcnt vmcnt(20)
    """)
    tile20()
    xstamp(0)
    a("v_lshlrev_b32 v5, 2, v1")
    for k in range(4): a(f"v_not_b32 v{28+k}, v{28+k}")
    for k in range(4): a(f"v_bfi_b32 v{24+k}, 1, v{28+k}, v{24+k}")
    a(f"""
    buffer_store_dwordx4 v[24:27], v7, s[40:43], s58 offen sc1
    s_mov_b32 s49, 0
L_a_qp:
    """)
    for rb in range(8):
        a(f"buffer_load_dwordx2 v[{64+2*rb}:{65+2*rb}], v6, s[40:43], {'s56' if rb < 4 else 's57'} offen offset:{(rb & 3)*1024} sc1")
    a("s_add_u32 s49, s49, 1\n s_waitcnt vmcnt(0)")
    for k in range(16): a(f"v_xor_b32 v{28 if k == 0 else 29}, v{64+k}, v{80+k}" + ("" if k == 0 else "\n v_and_b32 v28, v28, v29"))
    a(f"""
    v_and_b32 v28, 1, v28
    v_cmp_eq_u32 vcc, 0, v28
    s_cmp_ge_u32 s49, {spin_max}
    s_cbranch_scc1 L_a_q_got
    s_cbranch_vccz L_a_q_got
    {"s_sleep %d" % qsleep if qsleep else ""}
    s_cmp_lt_u32 s49, 6
    s_cbranch_scc1 L_a_qp
    s_cmp_eq_u32 s49, 6
    s_cbranch_scc0 L_a_q_noset
    v_mov_b32 v28, {OOB:#x}
    v_cmp_eq_u32 vcc, 0, v1
    v_cndmask_b32 v28, v28, v54, vcc
    v_mov_b32 v29, 1
    buffer_atomic_add v29, v28, s[64:67], 0 offen sc1
    s_mov_b32 s69, 0x10000
L_a_q_noset:
    buffer_load_dword v28, v54, s[64:67], 0 offen sc1
    s_waitcnt vmcnt(0)
    v_and_b32 v28, 0xffff, v28
    s_nop 0
    v_readfirstlane_b32 s55, v28
    s_cmp_ge_u32 s55, 8
    s_cbranch_scc1 L_a_q_flagged
    s_sleep 8
    s_branch L_a_qp
L_a_q_flagged:
    """)
    for rb in range(8):
        a(f"buffer_load_dwordx2 v[{64+2*rb}:{65+2*rb}], v6, s[40:43], {'s56' if rb < 4 else 's57'} offen offset:{(rb & 3)*1024} sc1")
    a("s_waitcnt vmcnt(0)\nL_a_q_got:")
    xstamp(1)
    if stamps: a("s_mov_b32 s92, s49")
    for k in range(16): a(f"v_and_b32 v{64+k}, -2, v{64+k}")
    for k in range(2):
        a(f"""
        v_add_f32 v{64+k}, v{64+k}, v{66+k}
        v_add_f32 v{68+k}, v{68+k}, v{70+k}
        v_add_f32 v{72+k}, v{72+k}, v{74+k}
        v_add_f32 v{76+k}, v{76+k}, v{78+k}
        v_add_f32 v{64+k}, v{64+k}, v{68+k}
        v_add_f32 v{72+k}, v{72+k}, v{76+k}
        v_add_f32 v{64+k}, v{64+k}, v{72+k}
        """)
    a(f"""
    v_cvt_pk_bf16_f32 v64, v64, v65
    ds_write_b32 v5, v64 offset:{L_QB}
    s_waitcnt lgkmcnt(0)
    s_branch L_a_barA
L_a_notw0:
    """)
    if a0: a("s_barrier")
    a(f"""
    s_waitcnt lgkmcnt(0)
    """)
    srd(44, 4, 5, 2560)
    srd(40, 28, 29, hex(WS_SIZE))
    srd(64, 26, 27, 256)
    tau_fg()
    a(f"""
    s_cmp_eq_u32 s3, 2
    s_cbranch_scc0 L_a_noclear
    v_mov_b32 v64, {SENT:#x}
    v_mov_b32 v65, v64
    v_mov_b32 v66, v64
    v_mov_b32 v67, v64
    v_lshlrev_b32 v68, 4, v1
    s_mul_i32 s56, s34, 2560
    v_mov_b32 v70, {OOB:#x}
    v_cmp_gt_u32 vcc, 32, v1
    v_cndmask_b32 v69, v70, v68, vcc
    buffer_store_dwordx4 v[64:67], v68, s[40:43], s56 offen sc1
    buffer_store_dwordx4 v[64:67], v68, s[40:43], s56 offen offset:1024 sc1
    buffer_store_dwordx4 v[64:67], v69, s[40:43], s56 offen offset:2048 sc1
    """)
    if opt_h: a(f"""
    s_lshl_b32 s56, s34, 11
    s_add_u32 s56, s56, {WS_O}
    buffer_store_dwordx4 v[64:67], v68, s[40:43], s56 offen sc1
    buffer_store_dwordx4 v[64:67], v68, s[40:43], s56 offen offset:1024 sc1
    """)
    a(f"""
    s_lshl_b32 s56, s34, 9
    s_add_u32 s56, s56, {WS_ML}
    v_cmp_gt_u32 vcc, 32, v1
    v_cndmask_b32 v69, v70, v68, vcc
    buffer_store_dwordx4 v[64:67], v69, s[40:43], s56 offen sc1
    s_cmp_lt_u32 s35, 224
    s_cbranch_scc0 L_a_noclear_f
    s_lshl_b32 s56, s35, 10
    s_add_u32 s56, s56, {WS_F1}
    buffer_store_dwordx4 v[64:67], v68, s[40:43], s56 offen sc1
L_a_noclear_f:
    """)
    if pretouch: a(f"""
    s_lshl_b32 s56, s33, 21
    s_lshl_b32 s57, s32, 19
    s_add_u32 s56, s56, s57
    s_add_u32 s68, s8, s56
    s_addc_u32 s69, s9, 0
    s_mov_b32 s70, 0x80000
    s_mov_b32 s71, 0x20000
    v_mov_b32 v71, 0
    v_mov_b32 v72, 0x7fffc
    buffer_load_dword v73, v71, s[68:71], 0 offen nt
    buffer_load_dword v74, v72, s[68:71], 0 offen nt
    s_mov_b32 s68, s12
    s_mov_b32 s69, s13
    s_mov_b32 s70, 5242880
    s_mul_i32 s56, s30, {128*1280}
    buffer_load_dword v75, v71, s[68:71], s56 offen nt
    s_mov_b32 s68, s20
    s_mov_b32 s69, s21
    s_mov_b32 s70, {1728*1280}
    s_mul_i32 s56, s61, {16*1280}
    buffer_load_dword v76, v71, s[68:71], s56 offen nt
    """)
    a(f"""
    s_waitcnt vmcnt(0)
L_a_noclear:
    s_cmp_eq_u32 s3, 3
    s_cbranch_scc0 L_a_nogate
    """)
    gates()
    a("L_a_nogate:")
    selectors()
    a(f"""
L_a_barA:
    s_barrier
    """)
    stamp(1)
    a(f"""
    s_cmp_eq_u32 s3, 0
    s_cbranch_scc0 L_a_notw0b
    v_mov_b32 v68, {OOB:#x}
    v_cmp_eq_u32 vcc, 0, v1
    v_cndmask_b32 v68, v68, v54, vcc
    v_mov_b32 v69, s69
    {"s_nop 0" if x_noflag else "buffer_atomic_add v69, v68, s[64:67], 0 offen sc1"}
    """)
    tau_fg()
    a(f"""
L_a_notw0b:
    s_cmp_eq_u32 s3, 1
    s_cbranch_scc0 L_a_notw1
    s_cmp_lt_u32 s35, 224
    s_cbranch_scc0 L_a_notw1
    s_and_b32 s57, s35, 7
    s_mul_i32 s57, s57, 80
    v_mad_u32_u24 v64, v2, 20, s57
    v_lshrrev_b32 v6, 3, v3
    v_mul_u32_u24 v6, 1280, v6
    v_lshl_add_u32 v65, v64, 1, v6       ; x offset
    v_mul_u32_u24 v64, 3456, v64
    s_lshr_b32 s57, s35, 3               ; m*14 + cb
    s_cmp_ge_u32 s57, 14
    s_cselect_b32 s36, s18, s16
    s_cselect_b32 s37, s19, s17
    s_cselect_b32 s56, 14, 0
    s_sub_u32 s57, s57, s56
    s_lshl_b32 s57, s57, 8               ; cb*256
    s_mov_b32 s38, 2211840
    s_mov_b32 s39, 0x20000
    v_lshl_add_u32 v66, v3, 4, s57
    v_add_u32 v64, v64, v66
    s_mov_b32 s48, 0
    s_movk_i32 s49, 3456
    """)
    for k in range(5): a(f"buffer_load_dwordx2 v[{44+2*k}:{45+2*k}], v65, s[44:47], 0 offen offset:{8*k}")
    for t in range(20):
        a(f"buffer_load_dwordx4 {wreg(t)}, v64, s[36:39], s48 offen{WF}")
        if t < 19: a("s_add_u32 s48, s48, s49")
    slot_offset()
    a(f"""
    s_lshl_b32 s57, s35, 10
    s_add_u32 s57, s57, {WS_F1}
    s_waitcnt vmcnt(20)
    """)
    tile20()
    for k in range(4): a(f"v_min_u32 v{24+k}, 0xfffffffe, v{24+k}")
    a(f"""
    buffer_store_dwordx4 v[24:27], v7, s[40:43], s57 offen sc1
L_a_notw1:
    """)
    ts(1)
    a(f"""
    v_mov_b32 v72, 0
    ds_read_b128 v[64:67], v72 offset:{L_G}
    s_waitcnt lgkmcnt(0)
    v_readfirstlane_b32 s62, v64
    v_readfirstlane_b32 s63, v65
    v_readfirstlane_b32 s50, v66
    v_readfirstlane_b32 s51, v67
    """)
    if opt_h:
        srd(36, 12, 13, 5242880)
        a(f"""
    s_lshl_b32 s56, s30, 7
    s_lshl_b32 s57, s32, 5
    s_add_u32 s56, s56, s57
    s_lshl_b32 s57, s3, 3
    s_add_u32 s56, s56, s57
    v_lshl_add_u32 v4, v2, 1, s56        ; row
    v_mul_u32_u24 v4, 1280, v4
    v_lshl_add_u32 v4, v3, 4, v4
    s_movk_i32 s48, 1280
    """)
        for rg in range(2):
            for cb in range(5):
                a(f"buffer_load_dwordx4 {wreg(rg*5+cb)}, v4, s[36:39], {'0' if rg == 0 else 's48'} offen offset:{cb*256}{WOF}")
    else:
        srd(36, 12, 13, 5242880)
        a(f"""
    s_lshl_b32 s56, s30, 7
    s_lshl_b32 s57, s3, 5
    s_add_u32 s56, s56, s57
    v_lshl_add_u32 v4, v2, 3, s56        ; row = h*128 + 32v + 8g
    v_mul_u32_u24 v4, 1280, v4
    v_lshl_add_u32 v4, v3, 4, v4
    """)
        for rg in range(8):
            a(f"s_movk_i32 s48, {rg*1280}")
            for cb in range(5):
                if rg*5+cb >= wo_n: continue
                a(f"buffer_load_dwordx4 {wreg(rg*5+cb)}, v4, s[36:39], s48 offen offset:{cb*256}{WOF}")
                if wo_pace and (rg*5+cb) >= wo_pace-1: a(f"s_waitcnt vmcnt({wo_pace-1})")
    stamp(2)
    srd(36, 20, 21, 1728*1280)
    a(f"""
    s_cmp_lt_u32 s61, 108
    s_cbranch_scc0 L_a_nowd
    s_lshl_b32 s56, s61, 4
    s_lshl_b32 s57, s3, 2
    s_add_u32 s56, s56, s57
    v_add_u32 v4, s56, v2
    v_mul_u32_u24 v4, 1280, v4
    v_lshl_add_u32 v4, v3, 4, v4
    """)
    for cb in range(5): a(f"buffer_load_dwordx4 v[{64+4*cb}:{67+4*cb}], v4, s[36:39], 0 offen offset:{cb*256}{WDF}")
    a("L_a_nowd:")
    ts(2)
    if x_noflag or x_nocheck & 1: a("s_branch L_a_all_done")
    if ldsconf: a(f"""
    s_cmp_eq_u32 s3, 0
    s_cbranch_scc1 L_a_all0
    v_mov_b32 v87, 0
    s_mov_b32 s49, 0
L_a_conf:
    ds_read_b32 v88, v87 offset:{L_G+16}
    s_add_u32 s49, s49, 1
    s_waitcnt lgkmcnt(0)
    v_readfirstlane_b32 s56, v88
    s_cmp_ge_u32 s49, {spin_max*16}
    s_cbranch_scc1 L_a_all_done
    s_cmp_lg_u32 s56, 0
    s_cbranch_scc1 L_a_all_done
    s_sleep 4
    s_branch L_a_conf
L_a_all0:
    """)
    a(f"""
    v_and_b32 v87, 31, v1
    v_mul_u32_u24 v87, {cstride}, v87
    v_mov_b32 v86, 0x80000
    s_mov_b32 s49, 0
L_a_all:
    buffer_load_dword v88, v87, s[64:67], 0 offen sc1
    s_add_u32 s49, s49, 1
    s_waitcnt vmcnt(0)
    v_cmp_gt_u32 vcc, v86, v88
    s_cmp_ge_u32 s49, {spin_max}
    s_cbranch_scc1 L_a_all_ok
    s_cbranch_vccz L_a_all_ok
    s_sleep 64
    s_branch L_a_all
L_a_all_ok:
    """)
    if ldsconf: a(f"""
    v_mov_b32 v87, 0
    v_mov_b32 v88, 1
    ds_write_b32 v87, v88 offset:{L_G+16}
    """)
    a(f"""
L_a_all_done:
    """)
    if stamps: a("s_mov_b32 s95, s49")
    ts(3)
    if stamps: a("v_writelane_b32 v63, s95, 10")
    for k in range(20): a(f"v_mov_b32 v{24+k}, 0")
    a(f"""
    s_cmp_lt_u32 s61, 108
    s_cbranch_scc0 L_a_noffn2
    s_lshr_b32 s56, s61, 3               ; cb = f >> 7
    s_lshl_b32 s56, s56, 13
    s_lshl_b32 s57, s31, 9
    s_add_u32 s56, s56, s57
    s_and_b32 s57, s61, 7
    s_lshl_b32 s57, s57, 6
    s_add_u32 s56, s56, s57
    s_lshl_b32 s57, s3, 4
    s_add_u32 s56, s56, s57
    s_add_u32 s56, s56, {WS_F1}          ; + (16 (fg&7) + 4v)*4
    v_and_b32 v86, 7, v3
    v_lshlrev_b32 v86, 10, v86           ; rb*1024
    v_lshrrev_b32 v87, 3, v3
    v_mul_u32_u24 v87, {14*8*1024}, v87  ; matrix
    v_add_u32 v86, v86, v87
    v_lshl_add_u32 v86, v2, 2, v86       ; + g*4
    v_mov_b32 v44, 0
    s_mov_b32 s49, 0
L_a_f1:
    buffer_load_dword v88, v86, s[40:43], s56 offen sc1
    s_add_u32 s49, s49, 1
    s_waitcnt vmcnt(0)
    v_cmp_eq_u32 vcc, -1, v88
    s_cmp_ge_u32 s49, {spin_max}
    s_cbranch_scc1 L_a_f1_done
    s_cbranch_vccz L_a_f1_done
    s_sleep 16
    s_branch L_a_f1
L_a_f1_done:
    """)
    if stamps: a("s_mov_b32 s95, s49")
    ts(4)
    if stamps: a("v_writelane_b32 v63, s95, 11")
    a(f"""
    v_add_f32_dpp v88, v88, v88 quad_perm:[1,0,3,2] {FULL}
    v_add_f32_dpp v88, v88, v88 quad_perm:[2,3,0,1] {FULL}
    v_add_f32_dpp v88, v88, v88 row_half_mirror {FULL}
    v_mov_b32_dpp v89, v88 row_ror:8 {FULL}
    """)
    if mimic: rbf(88); rbf(89)
    a(f"""
    v_mul_f32 v90, {f2u(-LOG2E):#x}, v88
    v_exp_f32 v90, v90
    v_add_f32 v90, 1.0, v90
    v_rcp_f32 v90, v90
    v_mul_f32 v90, v90, v88
    """)
    if mimic: rbf(90)
    a(f"""
    v_mul_f32 v90, v90, v89
    s_mov_b32 exec_lo, 0x00ff00ff
    s_mov_b32 exec_hi, 0x00ff00ff
    v_cvt_pk_bf16_f32 v44, v90, v90
    s_mov_b64 exec, -1
    """)
    perms(16, 44, 8)
    for cb in range(5): mfma(24+4*cb, 16, f"v[{64+4*cb}:{67+4*cb}]")
    a("s_cmp_eq_u32 s31, 0\n s_cselect_b32 s56, s50, s51")
    for k in range(20): a(f"v_mul_f32 v{24+k}, s56, v{24+k}")
    a("L_a_noffn2:")
    ts(5)
    if opt_h:
        a(f"""
    s_cmp_eq_u32 s31, 0
    s_cselect_b32 s68, s62, s63
    s_lshl_b32 s54, s33, 13
    s_add_u32 s54, s54, {WS_O}
    s_lshl_b32 s55, s32, 7
    s_add_u32 s54, s54, s55
    s_lshl_b32 s55, s3, 5
    s_add_u32 s54, s54, s55              ; + (32 split + 8 v)*4
    v_lshlrev_b32 v6, 9, v3
    v_lshl_add_u32 v6, v2, 3, v6         ; + 2g*4
    v_add_u32 v6, s54, v6
    v_mov_b32 v44, 0
    s_mul_i32 s54, s3, 2560
    v_lshlrev_b32 v7, 5, v3
    v_lshl_add_u32 v7, v2, 4, v7
    v_add_u32 v7, s54, v7
    s_waitcnt vmcnt(0)
    """)
    else:
        a(f"""
    s_cmp_eq_u32 s31, 0
    s_cselect_b32 s68, s62, s63
    s_lshl_b32 s54, s3, 7
    v_lshl_add_u32 v6, v2, 5, s54
    v_mov_b32 v44, 0x0c0c0c0c
    v_cmp_gt_u32 vcc, 8, v3
    v_cndmask_b32 v48, v44, v8, vcc
    v_cndmask_b32 v49, v44, v9, vcc
    v_cndmask_b32 v50, v44, v10, vcc
    v_cndmask_b32 v51, v44, v11, vcc
    v_cndmask_b32 v52, v44, v12, vcc
    v_cndmask_b32 v53, v44, v13, vcc
    v_cndmask_b32 v54, v44, v14, vcc
    v_cndmask_b32 v55, v44, v15, vcc
    s_mul_i32 s54, s3, 2560
    v_lshlrev_b32 v7, 5, v3
    v_lshl_add_u32 v7, v2, 4, v7
    v_add_u32 v7, s54, v7
    s_waitcnt vmcnt(0)
    """)
    stamp(3)
    a("s_barrier")
    stamp(4)
    if opt_h:
        a(f"""
    s_mov_b32 s49, 0
L_a_o:
    buffer_load_dwordx2 v[64:65], v6, s[40:43], 0 offen sc1
    s_add_u32 s49, s49, 1
    s_waitcnt vmcnt(0)
    v_max_u32 v66, v64, v65
    v_cmp_eq_u32 vcc, -1, v66
    s_cmp_ge_u32 s49, {spin_max}
    s_cbranch_scc1 L_a_o_done
    s_cbranch_vccnz L_a_o
L_a_o_done:
    """)
        for rr in (8, 4, 2, 1):
            a(f"v_add_f32_dpp v64, v64, v64 row_ror:{rr} {FULL}\n v_add_f32_dpp v65, v65, v65 row_ror:{rr} {FULL}")
        a(f"""
    s_mov_b32 exec_lo, 0x00ff00ff
    s_mov_b32 exec_hi, 0x00ff00ff
    v_cvt_pk_bf16_f32 v44, v64, v65
    s_mov_b64 exec, -1
    """)
        perms(16, 44, 8)
        perms(20, 44, 12)
        for cb in range(5): mfma(24+4*cb, 16, wreg(cb))
        for cb in range(5): mfma(24+4*cb, 20, wreg(5+cb))
    else:
        for hh in range(2):
            for w in range(4):
                a(f"ds_read_b128 v[{64+8*w+4*hh}:{67+8*w+4*hh}], v6 offset:{L_OP+512*w+16*hh}")
        def osum(k0):
            for k in range(k0, k0+4): a(f"v_add_f32 v{64+k}, v{64+k}, v{72+k}\n v_add_f32 v{80+k}, v{80+k}, v{88+k}")
            for k in range(k0, k0+4): a(f"v_add_f32 v{64+k}, v{64+k}, v{80+k}")
            for r in range(k0//2, k0//2+2): a(f"v_cvt_pk_bf16_f32 v{44+r}, v{64+2*r}, v{65+2*r}")
        def pm(rg, r):
            A = 16 + 4*(rg & 1)
            a(f"v_perm_b32 v{A+r}, v{44+(rg >> 1)}, v{44+(rg >> 1)}, v{48+4*(rg & 1)+r}")
        lgkm(4)
        osum(0)
        for r in range(4): pm(0, r)
        extra = []
        for rg in range(8):
            A = 16 + 4*(rg & 1)
            for cb in range(5):
                mfma(24+4*cb, A, wreg(rg*5+cb))
                if rg == 1 and cb == 0:
                    lgkm(0); osum(4)
                if rg < 7 and cb < 4: pm(rg+1, cb)
    a("s_mov_b32 exec_hi, 0")
    for cb in range(5): a(f"ds_write_b128 v7, v[{24+4*cb}:{27+4*cb}] offset:{L_YP+cb*512}")
    a(f"""
    s_mov_b32 exec_hi, -1
    s_waitcnt lgkmcnt(0)
    s_barrier
    s_branch L_pub
    """)
    a(f"""
L_stream:
    """)
    if prio: a(f"s_setprio {prio}")
    if stamps: a("s_memtime s[88:89]")
    a(f"""
    s_sub_u32 s57, s3, 4
    s_lshl_b32 s56, s33, 21
    s_lshl_b32 s58, s32, 19
    s_add_u32 s56, s56, s58
    v_lshlrev_b32 v4, 4, v1          ; lane*16
    s_lshr_b32 s58, s2, 3
    s_mul_i32 s58, s58, {ra}
    s_and_b32 s59, s2, 7
    s_mul_i32 s59, s59, {rx}
    s_add_u32 s58, s58, s59
    s_lshl_b32 s58, s58, {ru}
    s_lshl_b32 s59, s57, 12
    s_add_u32 s48, s58, s59
    s_and_b32 s48, s48, 0x7ffff
    v_mov_b32 v14, {OOB:#x}
    s_lshl_b32 s59, s34, 2
    s_add_u32 s59, s59, s57
    s_lshl_b32 s59, s59, 7
    s_add_u32 s59, s59, {WS_ML}
    v_lshl_add_u32 v47, v1, 3, s59
    v_cmp_gt_u32 vcc, 16, v1
    v_cndmask_b32 v47, v14, v47, vcc
    s_waitcnt lgkmcnt(0)
    s_add_u32 s36, s6, s56
    s_addc_u32 s37, s7, 0
    s_mov_b32 s38, 0x80000
    s_mov_b32 s39, 0x20000
    s_add_u32 s44, s8, s56
    s_addc_u32 s45, s9, 0
    """)
    srd(40, 28, 29, hex(WS_SIZE))
    srd(64, 26, 27, 256)
    if a0: a("s_barrier")
    VF = SF if vflag is None else ((" " + vflag) if vflag else "")
    def sload(s, fl=None):
        a(f"buffer_load_dwordx4 {ring(s)}, v4, s[36:39], s48 offen offset:{(s&3)*1024}{SF if fl is None else fl}")
        if (s & 3) == 3: a("s_add_u32 s48, s48, 0x4000\n s_and_b32 s48, s48, 0x7ffff")
    for s in range(depth):
        if thr and s >= thr: a(f"s_waitcnt vmcnt({thr-1})")
        sload(s)
    a(f"""
    v_and_b32 v32, 1, v3
    v_mov_b32 v33, 0xffff
    v_mov_b32 v34, 0xffff0000
    v_cmp_eq_u32 vcc, 1, v32
    v_cndmask_b32 v33, v33, v34, vcc
    v_lshrrev_b32 v32, 1, v3              ; c>>1
    """)
    for r in range(4):
        a(f"v_cmp_eq_u32 vcc, {r}, v32\n v_cndmask_b32 v{16+r}, 0, v33, vcc")
    Q = 80
    a(f"""
    s_mov_b32 s50, 0xaaaaaaaa
    s_mov_b32 s51, 0xaaaaaaaa
    s_mov_b32 s52, 0xcccccccc
    s_mov_b32 s53, 0xcccccccc
    v_lshlrev_b32 v46, 4, v3
    s_barrier
    """)
    stamp(1)
    a(f"""
    ds_read_b128 v[{Q}:{Q+3}], v46 offset:{L_QB}
    s_lshl_b32 s59, s31, 2
    v_mov_b32 v56, s59
    ds_read_b32 v56, v56 offset:{L_G}
    s_mov_b32 s49, 0
    s_waitcnt lgkmcnt(0)
L_kloop:
    """)
    Pa, Pb, Qe, Qo, T0, T1, t1, t2 = 32, 33, 36, 37, 40, 41, 42, 43
    R = [38, 39, 34, 35]
    U = [44, 45]
    ngroups = depth//16
    assert depth in (16, 32)
    for grp in range(ngroups):
        for k in range(8):
            for half, P in ((0, Pa), (1, Pb)):
                s = grp*16 + 2*k + half
                if not thr: a(f"s_waitcnt vmcnt({depth-1})")
                a(f"v_mov_b32 v{P}, 0")
                if x_nok: a(f"v_add_u32 v{P}, {ringr(s, 0)}, v{Q}")
                else:
                    for r in range(4): a(f"v_dot2c_f32_bf16 v{P}, {ringr(s, r)}, v{Q+r}")
                if thr: a(f"s_waitcnt vmcnt({thr-1})")
                sload(s)
            if x_nok == 2: continue
            Qx = Qe if k % 2 == 0 else Qo
            a(f"v_add_f32_dpp v{Qx}, v{Pa}, v{Pa} row_ror:8 row_mask:0xf bank_mask:0x3")
            a(f"v_add_f32_dpp v{Qx}, v{Pb}, v{Pb} row_ror:8 row_mask:0xf bank_mask:0xc")
            if k % 2 == 1:
                Rx = R[k >> 1]
                a(f"v_add_f32_dpp v{Rx}, v{Qe}, v{Qe} row_shl:4 row_mask:0xf bank_mask:0x5")
                a(f"v_add_f32_dpp v{Rx}, v{Qo}, v{Qo} row_shr:4 row_mask:0xf bank_mask:0xa")
            if k in (3, 7):
                Re, Ro = (R[0], R[1]) if k == 3 else (R[2], R[3])
                T = T0 if k == 3 else T1
                a(f"v_add_f32_dpp v{t1}, v{Re}, v{Re} quad_perm:[2,3,0,1] {FULL}")
                a(f"v_add_f32_dpp v{t2}, v{Ro}, v{Ro} quad_perm:[2,3,0,1] {FULL}")
                a(f"v_cndmask_b32 v{T}, v{t1}, v{t2}, s[52:53]")
        a(f"v_add_f32_dpp v{t1}, v{T0}, v{T0} quad_perm:[1,0,3,2] {FULL}")
        a(f"v_add_f32_dpp v{t2}, v{T1}, v{T1} quad_perm:[1,0,3,2] {FULL}")
        a(f"v_cndmask_b32 v{U[grp]}, v{t1}, v{t2}, s[50:51]")
    niter = 128//depth
    for k in range(8-ngroups): a(f"v_mov_b32 v{8+k}, v{8+k+ngroups}")
    for gidx in range(ngroups): a(f"v_mov_b32 v{8+8-ngroups+gidx}, v{U[gidx]}")
    a(f"""
    """)
    ts_dyn(16)
    a(f"""
    s_add_u32 s49, s49, 1
    s_cmp_eq_u32 s49, {niter-1}
    s_cselect_b32 s36, s44, s36
    s_cselect_b32 s37, s45, s37
    s_cmp_lt_u32 s49, {niter}
    s_cbranch_scc1 L_kloop
    """)
    stamp(2)
    c1 = f2u(128**-0.5*LOG2E)
    a(f"""
    v_max3_f32 v32, v8, v9, v10
    v_max3_f32 v32, v32, v11, v12
    v_max3_f32 v32, v32, v13, v14
    v_max_f32 v32, v32, v15
    """)
    allreduce("v_max_f32", 32)
    a(f"v_mov_b32 v33, {c1:#x}\n v_mul_f32 v32, v33, v32")
    for k in range(8): a(f"v_fma_f32 v{8+k}, v{8+k}, v33, -v32")
    for k in range(8): a(f"v_exp_f32 v{8+k}, v{8+k}")
    a(f"""
    v_add_f32 v34, v8, v9
    v_add_f32 v35, v10, v11
    v_add_f32 v36, v12, v13
    v_add_f32 v37, v14, v15
    v_add_f32 v34, v34, v35
    v_add_f32 v36, v36, v37
    v_add_f32 v34, v34, v36
    """)
    allreduce("v_add_f32", 34)
    for k in range(8): a(f"v_cvt_pk_bf16_f32 v{8+k}, v{8+k}, v{8+k}")
    a(f"""
    v_min_u32 v36, 0xfffffffe, v32
    v_min_u32 v37, 0xfffffffe, v34
    {"s_nop 0" if x_noml else "buffer_store_dwordx2 v[36:37], v47, s[40:43], 0 offen sc1"}
    v_mov_b32 v28, 0
    v_mov_b32 v29, 0
    v_mov_b32 v30, 0
    v_mov_b32 v31, 0
    """)
    if opt_h: a(f"""
    s_lshl_b32 s58, s34, 2
    s_add_u32 s58, s58, s57
    s_lshl_b32 s58, s58, 9
    s_add_u32 s58, s58, {WS_O}
    v_lshlrev_b32 v46, 5, v3             ; c*32
    v_lshl_add_u32 v46, v2, 4, v46       ; + lg*16
    v_add_u32 v46, s58, v46
    v_mov_b32 v55, {OOB:#x}
    v_cmp_gt_u32 vcc, 32, v1
    v_cndmask_b32 v46, v55, v46, vcc
    """)
    else: a(f"""
    s_lshl_b32 s58, s57, 9
    v_lshlrev_b32 v46, 5, v3             ; c*32
    v_lshl_add_u32 v46, v2, 4, v46       ; + lg*16
    v_add_u32 v46, s58, v46
    """)
    a(f"""
    v_and_b32 v48, 31, v1
    v_mul_u32_u24 v48, {cstride}, v48
    v_mov_b32 v49, 0x80000
    s_lshl_b32 s58, s33, 11
    s_add_u32 s58, s58, {WS_ML}
    v_lshl_add_u32 v51, v3, 7, s58
    s_mov_b32 s49, 0
L_vloop:
    """)
    def vpos(s, last):
        t = s & 15
        c = 4*rev2(t & 3) + rev2(t >> 2)
        P = 8 + (s >> 4)
        A = 20 + 4*(s & 1)
        a(f"s_waitcnt vmcnt({depth-1-s if last else depth-1})")
        if x_nov: a(f"v_add_u32 v28, {ringr(s, 0)}, v28")
        else:
            for r in range(4): a(f"v_and_b32_dpp v{A+r}, v{P}, v{16+r} row_newbcast:{c} {FULL}")
            mfma(28, A, ring(s))
        if not last:
            if vthr: a(f"s_waitcnt vmcnt({vthr-1})")
            sload(s, VF)
    for s_ in range(depth): vpos(s_, False)
    for k in range(8-ngroups): a(f"v_mov_b32 v{8+k}, v{8+k+ngroups}")
    ts_dyn(32)
    i_flag, i_ml = (niter-4, niter-3) if not x_noml else (99, 99)
    if (x_noflag or x_nocheck & 2) and not x_noml: i_flag = 99
    if ldsconf and not (x_noflag or x_nocheck & 2): a(f"""
    s_cmp_eq_u32 s49, {i_ml}
    s_cbranch_scc0 L_v_n2
    s_mov_b32 s59, 0
    v_mov_b32 v50, 0
L_v_fl:
    ds_read_b32 v49, v50 offset:{L_G+16}
    s_add_u32 s59, s59, 1
    s_waitcnt lgkmcnt(0)
    v_readfirstlane_b32 s58, v49
    s_cmp_ge_u32 s59, {spin_max*16}
    s_cbranch_scc1 L_v_fl_done
    s_cmp_lg_u32 s58, 0
    s_cbranch_scc1 L_v_fl_done
    s_sleep 4
    s_branch L_v_fl
    """)
    else:
        a(f"""
    s_cmp_eq_u32 s49, {i_flag}
    s_cbranch_scc0 L_v_n1
    buffer_load_dword v50, v48, s[64:67], 0 offen sc1
L_v_n1:
    s_cmp_eq_u32 s49, {i_ml}
    s_cbranch_scc0 L_v_n2
    s_mov_b32 s59, {spin_max if (x_noflag or x_nocheck & 2) else 0}
    s_waitcnt vmcnt({depth})
L_v_fl:
    v_cmp_gt_u32 vcc, v49, v50
    s_add_u32 s59, s59, 1
    s_cmp_ge_u32 s59, {spin_max}
    s_cbranch_scc1 L_v_fl_done
    s_cbranch_vccz L_v_fl_done
    s_sleep 32
    buffer_load_dword v50, v48, s[64:67], 0 offen sc1
    s_waitcnt vmcnt(0)
    s_branch L_v_fl
    """)
    a(f"""
L_v_fl_done:
    buffer_load_dwordx2 v[52:53], v51, s[40:43], 0 offen sc1
L_v_n2:
    s_add_u32 s49, s49, 1
    s_cmp_lt_u32 s49, {niter-1}
    s_cbranch_scc1 L_vloop
    s_mov_b32 s59, {spin_max if x_noml else 0}
    s_waitcnt vmcnt({depth})
L_v_ml:
    v_max_u32 v54, v52, v53
    v_cmp_eq_u32 vcc, -1, v54
    s_add_u32 s59, s59, 1
    s_cmp_ge_u32 s59, {spin_max}
    s_cbranch_scc1 L_v_ml_done
    s_cbranch_vccz L_v_ml_done
    s_sleep 8
    buffer_load_dwordx2 v[52:53], v51, s[40:43], 0 offen sc1
    s_waitcnt vmcnt(0)
    s_branch L_v_ml
L_v_ml_done:
    v_mov_b32 v54, v52
    """)
    for rr in (8, 4, 2, 1): a(f"v_max_f32_dpp v54, v54, v54 row_ror:{rr} {FULL}")
    a("v_sub_f32 v52, v52, v54\n v_exp_f32 v52, v52\n v_mul_f32 v53, v52, v53")
    for rr in (8, 4, 2, 1): a(f"v_add_f32_dpp v53, v53, v53 row_ror:{rr} {FULL}")
    a(f"""
    v_rcp_f32 v53, v53
    s_lshl_b32 s59, s32, 2
    s_add_u32 s59, s59, s57
    v_mul_f32 v52, v52, v53
    v_mul_f32 v52, v52, v56
    s_nop 0
    v_readlane_b32 s68, v52, s59
    """)
    for s_ in range(depth): vpos(s_, True)
    ts(35)
    if stamps: a("s_memtime s[90:91]")
    for k in range(4): a(f"v_mul_f32 v{28+k}, s68, v{28+k}")
    if opt_h:
        for k in range(4): a(f"v_min_u32 v{28+k}, 0xfffffffe, v{28+k}")
        a("buffer_store_dwordx4 v[28:31], v46, s[40:43], 0 offen sc1")
        stamp(3)
        a("s_barrier")
    else:
        stamp(3)
        a(f"""
    s_mov_b32 exec_hi, 0
    ds_write_b128 v46, v[28:31] offset:{L_OP}
    s_mov_b32 exec_hi, -1
    s_waitcnt lgkmcnt(0)
    s_barrier
    """)
    stamp(4)
    a("s_barrier\nL_pub:")
    stamp(5)
    a(f"""
    s_cmp_ge_u32 s3, 3
    s_cbranch_scc1 L_nopub
    v_lshlrev_b32 v46, 4, v0
    """)
    for w in range(4): a(f"ds_read_b128 v[{64+4*w}:{67+4*w}], v46 offset:{L_YP+2560*w}")
    a(f"""
    s_mul_i32 s54, s34, 2560
    v_add_u32 v47, s54, v46
    v_mov_b32 v45, {OOB:#x}
    v_cmp_gt_u32 vcc, 160, v0
    v_cndmask_b32 v47, v45, v47, vcc
    s_waitcnt lgkmcnt(0)
    """)
    for k in range(4): a(f"v_add_f32 v{64+k}, v{64+k}, v{68+k}\n v_add_f32 v{72+k}, v{72+k}, v{76+k}")
    for k in range(4): a(f"v_add_f32 v{64+k}, v{64+k}, v{72+k}")
    for k in range(4): a(f"v_min_u32 v{64+k}, 0xfffffffe, v{64+k}")
    a(f"""
    buffer_store_dwordx4 v[64:67], v47, s[40:43], 0 offen sc1
L_nopub:
    """)
    stamp(6)
    a(f"""
    s_cmp_ge_u32 s2, {0 if x_nofinal else 80}
    s_cbranch_scc1 L_fin
    s_cmp_ge_u32 s2, 40
    s_cselect_b32 s54, 1, 0              ; batch
    s_mul_i32 s55, s54, 40
    s_sub_u32 s55, s2, s55
    v_lshrrev_b32 v44, 2, v0             ; i
    v_and_b32 v45, 3, v0                 ; cq
    s_lshl_b32 s56, s55, 6
    v_lshl_add_u32 v45, v45, 4, s56
    s_mul_i32 s56, s54, {128*2560}
    v_mul_u32_u24 v46, 2560, v44
    v_add3_u32 v46, v46, v45, s56        ; Y address
    s_mov_b32 s49, 0
    """)
    if gpipe:
        def chk(r, nxt):
            a(f"""
            s_waitcnt vmcnt(1)
            v_max_u32 v60, v{r}, v{r+1}
            v_max3_u32 v60, v60, v{r+2}, v{r+3}
            v_cmp_eq_u32 vcc, -1, v60
            s_andn2_b64 exec, exec, vcc
            v_mov_b32 v56, v{r}
            v_mov_b32 v57, v{r+1}
            v_mov_b32 v58, v{r+2}
            v_mov_b32 v59, v{r+3}
            s_mov_b64 exec, vcc
            s_cbranch_execz L_g_done
            buffer_load_dwordx4 v[{r}:{r+3}], v46, s[40:43], 0 offen sc1
            """)
        a(f"""
        buffer_load_dwordx4 v[48:51], v46, s[40:43], 0 offen sc1
        s_sleep 2
        buffer_load_dwordx4 v[52:55], v46, s[40:43], 0 offen sc1
L_g:
        """)
        chk(48, 52)
        if gsleep: a(f"s_sleep {gsleep}")
        chk(52, 48)
        if gsleep: a(f"s_sleep {gsleep}")
        a(f"""
        s_add_u32 s49, s49, 1
        s_cmp_lt_u32 s49, {spin_max}
        s_cbranch_scc1 L_g
        """)
    else:
        a(f"""
L_g:
    buffer_load_dwordx4 v[48:51], v46, s[40:43], 0 offen sc1
    s_add_u32 s49, s49, 1
    s_waitcnt vmcnt(0)
    v_max_u32 v56, v48, v49
    v_max3_u32 v56, v56, v50, v51
    v_cmp_eq_u32 vcc, -1, v56
    s_cmp_ge_u32 s49, {spin_max}
    s_cbranch_scc1 L_g_done
    """)
        if gmask: a("s_and_b64 exec, exec, vcc\n s_cbranch_execnz L_g")
        else: a("s_cbranch_vccnz L_g")
    a(f"""
L_g_done:
    s_mov_b64 exec, -1
    """)
    R = 56 if gpipe else 48
    for rr in (8, 4):
        for k in range(4): a(f"v_add_f32_dpp v{R+k}, v{R+k}, v{R+k} row_ror:{rr} {FULL}")
    a(f"""
    v_lshlrev_b32 v44, 9, v3             ; cq*4*128
    s_lshl_b32 s56, s3, 4
    v_lshl_add_u32 v45, v2, 2, s56       ; (wave*4+row)*4
    v_add_u32 v44, v44, v45
    s_mov_b32 exec_lo, 0x000f000f
    s_mov_b32 exec_hi, 0x000f000f
    """)
    for k in range(4): a(f"ds_write_b32 v44, v{R+k} offset:{L_RP+128*k}")
    a(f"""
    s_mov_b64 exec, -1
    s_waitcnt lgkmcnt(0)
    s_barrier
    s_cmp_eq_u32 s3, 0
    s_cbranch_scc0 L_fin
    v_lshlrev_b32 v44, 5, v1
    ds_read_b128 v[64:67], v44 offset:{L_RP}
    ds_read_b128 v[68:71], v44 offset:{L_RP+16}
    """)
    srd(64, 24, 25, 2560)
    a(f"""
    s_mul_i32 s56, s54, 1280
    s_lshl_b32 s55, s55, 5
    s_add_u32 s56, s56, s55
    v_lshrrev_b32 v45, 2, v1
    v_lshl_add_u32 v45, v45, 1, s56
    v_and_b32 v46, 3, v1
    v_mov_b32 v43, {OOB:#x}
    v_cmp_eq_u32 vcc, 0, v46
    v_cndmask_b32 v45, v43, v45, vcc
    s_waitcnt lgkmcnt(0)
    v_add_f32 v64, v64, v65
    v_add_f32 v66, v66, v67
    v_add_f32 v68, v68, v69
    v_add_f32 v70, v70, v71
    v_add_f32 v64, v64, v66
    v_add_f32 v68, v68, v70
    v_add_f32 v64, v64, v68
    v_add_f32_dpp v64, v64, v64 quad_perm:[1,0,3,2] {FULL}
    v_add_f32_dpp v64, v64, v64 quad_perm:[2,3,0,1] {FULL}
    v_cvt_pk_bf16_f32 v64, v64, v64
    buffer_store_short v64, v45, s[64:67], 0 offen {oflag}
L_fin:
    """)
    if stamps:
        a(f"""
        s_memrealtime s[86:87]
        s_getreg_b32 s54, hwreg(HW_REG_XCC_ID)
        s_waitcnt lgkmcnt(0)
        s_lshl_b32 s55, s2, 3
        s_add_u32 s55, s55, s3
        s_lshl_b32 s55, s55, 6
        s_add_u32 s55, s55, {WS_STAMP}
        s_mov_b32 s40, s28
        s_mov_b32 s41, s29
        s_mov_b32 s42, 0x400000
        s_mov_b32 s43, 0x20000
        v_mov_b32 v48, s72
        v_mov_b32 v49, s74
        v_mov_b32 v50, s76
        v_mov_b32 v51, s78
        v_mov_b32 v52, s80
        v_mov_b32 v53, s82
        v_mov_b32 v54, s84
        v_mov_b32 v55, s86
        v_mov_b32 v56, s54
        v_mov_b32 v45, s55
        v_mov_b32 v43, {OOB:#x}
        v_cmp_eq_u32 vcc, 0, v1
        v_cndmask_b32 v45, v43, v45, vcc
        buffer_store_dwordx4 v[48:51], v45, s[40:43], 0 offen
        buffer_store_dwordx4 v[52:55], v45, s[40:43], 0 offen offset:16
        v_mov_b32 v57, s88
        v_mov_b32 v58, s90
        v_mov_b32 v59, s92
        buffer_store_dwordx4 v[56:59], v45, s[40:43], 0 offen offset:32
        s_lshl_b32 s55, s2, 3
        s_add_u32 s55, s55, s3
        s_lshl_b32 s55, s55, 8
        s_add_u32 s55, s55, {WS_STAMP + 0x40000}
        v_lshl_add_u32 v45, v1, 2, s55
        buffer_store_dword v63, v45, s[40:43], 0 offen
        """)
    a("L_end:\n s_endpgm")
    text, n = hz.fix(a.text())
    return wrap(text, 256, 512, LDS_BYTES, vgpr=256, sgpr=100, DESC=DESCRIPTION), n

if __name__ == "__main__":
    from build import build
    import json
    names = []
    for spec in sys.argv[1:]:
        kw = {}
        name, _, rest = spec.partition(":")
        for p in rest.split(","):
            if not p: continue
            k, v = p.split("=")
            kw[k] = v if k in ("sflag", "wflag", "woflag", "vflag", "wdflag", "oflag") else int(v, 0)
        for k in ("sflag", "wflag", "woflag", "vflag", "wdflag", "oflag"):
            if kw.get(k) == "none": kw[k] = ""
            if k in kw: kw[k] = kw[k].replace("+", " ")
        t, n = gen(**kw)
        open(f"work/{name}.s", "w").write(t)
        build(f"work/{name}.s")
        print(name, "nops inserted:", n, "lines:", t.count("\n"))
        names.append(name)
    print(json.dumps(["work/bench.py", "cdna_kernels/cdna_launch.py", "cdna_kernels/cdna_unwritten_srd_check.py", "gated_mix__mha_block_cached__swiglu_ffn__decode_np.py"] + sum([[f"work/{n}.co", f"work/{n}.s"] for n in names], [])))
```

```python
import sys, struct
sys.path.insert(0, "work")
from asmlib import *
import hz

SENT = 0xFFFFFFFF
OOB = 0x7FFF0000
WS_Y = 0
WS_ML = 0x19A000
WS_Q = 0xA2000
WS_F1 = 0xE2000
WS_O = 0x11A000
WS_SIZE = 0x1BA000
WS_STAMP = 0x200000
L_QB, L_G, L_OP, L_YP, L_RP = 0, 1024, 2048, 4096, 0
L_ST = L_YP
LDS_BYTES = 16384
LOG2E = 1.4426950408889634
def f2u(f): return struct.unpack("<I", struct.pack("<f", f))[0]
def rev2(x): return ((x & 1) << 1) | ((x >> 1) & 1)
FULL = "row_mask:0xf bank_mask:0xf"

DESCRIPTION = """;
;
"""

def gen(depth=32, sflag="nt", wflag="nt", woflag=None, stamps=0, spin_max=1 << 16, mimic=1, wo_pace=0, sleep=4, thr=6, vthr=0, wo_n=40, ml_delay=0, ml_sleep=16, hmap=0, ra=8, rx=1, ru=12, x_noflag=0, x_noml=0, x_noffn=0, a0=0, qsleep=0, opt_h=0, gmask=1, tail2=1, late=1, vflag=None, x_noq=0, x_nots=0, x_nocheck=0, ldsconf=1, cstride=8, wdflag=None, gpipe=0, prio=0, oflag='', swaproles=0, pretouch=0, x_nok=0, x_nov=0, x_nosm=0, x_nofinal=0, gsleep=0, x_exit=0, x_late=0, x_forceslow=0):
    a = Asm()
    SF = (" " + sflag) if sflag else ""
    WF = (" " + wflag) if wflag else ""
    WOF = WF if woflag is None else ((" " + woflag) if woflag else "")
    WDF = WF if wdflag is None else ((" " + wdflag) if wdflag else "")
    RING = 256 - depth*4
    def ring(s): return f"v[{RING+4*s}:{RING+4*s+3}]"
    def ringr(s, r): return f"v{RING+4*s+r}"
    W0 = 96
    def wreg(t): return f"v[{W0+4*t}:{W0+4*t+3}]"
    def stamp(k):
        if stamps: a(f"s_memrealtime s[{72+2*k}:{73+2*k}]")
    def xstamp(k):
        if stamps: a(f"s_memrealtime s[{88+2*k}:{89+2*k}]")
    SR = [63]
    def ts(idx):
        if stamps: a(f"s_memrealtime s[96:97]\n s_waitcnt lgkmcnt(0)\n v_writelane_b32 v{SR[0]}, s96, {idx}")
    def ts_dyn(base):
        if stamps and not x_nots: a(f"s_memrealtime s[96:97]\n s_add_u32 s94, s49, {base}\n s_waitcnt lgkmcnt(0)\n s_mov_b32 m0, s94\n v_writelane_b32 v{SR[0]}, s96, m0")
    def lgkm(n): a(f"s_waitcnt lgkmcnt({0 if stamps else n})")
    def allreduce(op, v):
        for rr in (8, 4, 2, 1): a(f"{op}_dpp v{v}, v{v}, v{v} row_ror:{rr} {FULL}")
        a(f"v_readlane_b32 s54, v{v}, 0\n v_readlane_b32 s55, v{v}, 16\n v_readlane_b32 s56, v{v}, 32\n v_readlane_b32 s58, v{v}, 48")
        a(f"v_mov_b32 v{v}, s54\n {op} v{v}, s55, v{v}\n {op} v{v}, s56, v{v}\n {op} v{v}, s58, v{v}")
    def rbf(v):
        a(f"v_cvt_pk_bf16_f32 v{v}, v{v}, v{v}\n v_lshlrev_b32 v{v}, 16, v{v}")
    def srd(base, lo, hi, size):
        a(f"s_mov_b32 s{base}, s{lo}\n s_mov_b32 s{base+1}, s{hi}\n s_mov_b32 s{base+2}, {size}\n s_mov_b32 s{base+3}, 0x20000")
    def mfma(d, A, B, C=None):
        a(f"v_mfma_f32_16x16x32_bf16 v[{d}:{d+3}], v[{A}:{A+3}], {B}, " + (C if C is not None else f"v[{d}:{d+3}]"))
    def perms(A, X, sel):
        for r in range(4): a(f"v_perm_b32 v{A+r}, v{X}, v{X}, v{sel+r}")
    a(f"""
    s_cmp_ge_u32 s2, 256
    s_cbranch_scc1 L_end
    s_load_dwordx16 s[4:19], s[0:1], 0
    s_load_dwordx8 s[20:27], s[0:1], 64
    s_load_dwordx2 s[28:29], s[0:1], 96
    """)
    stamp(0)
    if stamps: a("v_mov_b32 v63, 0")
    if swaproles: a("v_xor_b32 v0, 0x100, v0")
    a(f"""
    v_lshrrev_b32 v2, 6, v0
    v_and_b32 v1, 63, v0
    s_and_b32 s54, s2, 7             ; x
    v_readfirstlane_b32 s3, v2       ; wave
    s_lshr_b32 s55, s2, 3            ; j
    s_and_b32 s30, s55, 3
    """)
    if hmap == 0: a("s_lshl_b32 s56, s54, 2\n s_add_u32 s30, s30, s56          ; h = 4x + (j&3)")
    else: a("s_lshl_b32 s30, s30, 3\n s_add_u32 s30, s30, s54          ; h = x + 8 (j&3)")
    a(f"""
    s_bfe_u32 s31, s55, 0x10002      ; b = (j>>2)&1
    s_lshr_b32 s32, s55, 3           ; split
    s_lshl_b32 s33, s31, 5
    s_add_u32 s33, s33, s30          ; bh
    s_lshl_b32 s34, s33, 2
    s_add_u32 s34, s34, s32
    v_and_b32 v3, 15, v1             ; c
    v_lshrrev_b32 v2, 4, v1          ; g
    s_cmp_ge_u32 s3, 4
    s_cbranch_scc1 L_stream
    """)
    def selectors():
        a(f"""
        v_and_b32 v70, 1, v3
        v_mov_b32 v71, 0x0c0c0100
        v_mov_b32 v72, 0x01000c0c
        v_mov_b32 v73, 0x0c0c0302
        v_mov_b32 v74, 0x03020c0c
        v_cmp_eq_u32 vcc, 1, v70
        v_cndmask_b32 v71, v71, v72, vcc
        v_cndmask_b32 v73, v73, v74, vcc
        v_mov_b32 v75, 0x0c0c0c0c
        v_bfe_u32 v70, v3, 1, 2
        """)
        for r in range(4):
            a(f"v_cmp_eq_u32 vcc, {r}, v70\n v_cndmask_b32 v{8+r}, v75, v71, vcc\n v_cndmask_b32 v{12+r}, v75, v73, vcc")
    def tile20(extra=0):
        for t in range(20):
            A = 16 + 4*(t & 1)
            perms(A, 44 + (t >> 1), 8 + 4*(t & 1))
            a(f"s_waitcnt vmcnt({19-t+extra})")
            mfma(24, A, wreg(t), "0" if t == 0 else None)
    def tau_fg():
        a(f"""
        s_and_b32 s54, s2, 7                 ; x
        s_lshr_b32 s55, s2, 3                ; j
        s_lshr_b32 s56, s54, 1               ; x>>1
        s_mul_i32 s57, s56, 24
        s_add_u32 s57, s57, 128
        s_add_u32 s57, s57, s55
        s_cmp_ge_u32 s55, 24
        s_cselect_b32 s57, 999, s57          ; odd x
        s_lshl_b32 s35, s56, 5
        s_add_u32 s35, s35, s55              ; even x
        s_bitcmp1_b32 s54, 0
        s_cselect_b32 s35, s57, s35          ; tau: gate / up tile (>= 224: none)
        s_lshl_b32 s57, s32, 2
        s_and_b32 s59, s55, 3
        s_add_u32 s57, s57, s59              ; jb
        s_mul_i32 s59, s56, 11
        s_add_u32 s59, s59, s57
        s_add_u32 s59, s59, 59               ; 64 + 11*(x>>1) + jb - 5
        s_cmp_lt_u32 s57, 5
        s_cselect_b32 s59, 999, s59
        s_lshl_b32 s61, s56, 4
        s_add_u32 s61, s61, s57
        s_bitcmp1_b32 s54, 0
        s_cselect_b32 s61, s59, s61          ; fg: w_down row group (>= 108: none)
        """)
        if x_noffn: a("s_movk_i32 s35, 999\n s_movk_i32 s61, 999")
        a(f"""
        """)
    def gates():
        srd(36, 22, 23, 1280)
        a(f"""
    v_lshlrev_b32 v72, 5, v1
    v_mov_b32 v73, {OOB:#x}
    v_cmp_gt_u32 vcc, 40, v1
    v_cndmask_b32 v72, v73, v72, vcc
    buffer_load_dwordx4 v[44:47], v72, s[44:47], 0 offen
    buffer_load_dwordx4 v[48:51], v72, s[44:47], 0 offen offset:16
    buffer_load_dwordx4 v[52:55], v72, s[44:47], 0 offen offset:1280
    buffer_load_dwordx4 v[56:59], v72, s[44:47], 0 offen offset:1296
    buffer_load_dwordx4 v[64:67], v72, s[36:39], 0 offen
    buffer_load_dwordx4 v[68:71], v72, s[36:39], 0 offen offset:16
    """)
        a(f"""
    s_waitcnt vmcnt(0)
    v_mov_b32 v74, 0
    v_mov_b32 v75, 0
    """)
        if mimic:
            for bb in range(2):
                for k in range(8):
                    x = 44 + 8*bb + k; g_ = 64 + k
                    a(f"""
                v_lshlrev_b32 v76, 16, v{x}
                v_lshlrev_b32 v77, 16, v{g_}
                v_and_b32 v78, 0xffff0000, v{x}
                v_and_b32 v79, 0xffff0000, v{g_}
                v_mul_f32 v76, v76, v77
                v_mul_f32 v78, v78, v79
                v_cvt_pk_bf16_f32 v76, v76, v78
                v_lshlrev_b32 v77, 16, v76
                v_and_b32 v76, 0xffff0000, v76
                v_add_f32 v{74+bb}, v{74+bb}, v77
                v_add_f32 v{74+bb}, v{74+bb}, v76
                """)
        else:
            for k in range(8):
                a(f"v_dot2c_f32_bf16 v74, v{44+k}, v{64+k}\n v_dot2c_f32_bf16 v75, v{52+k}, v{64+k}")
        allreduce("v_add_f32", 74)
        allreduce("v_add_f32", 75)
        for bb in range(2):
            z = 74 + bb
            if mimic: rbf(z)
            a(f"""
        v_mul_f32 v{z}, {f2u(-LOG2E):#x}, v{z}
        v_exp_f32 v{z}, v{z}
        v_add_f32 v{z}, 1.0, v{z}
        v_rcp_f32 v{z}, v{z}
        """)
            if mimic: rbf(z)
            a(f"v_sub_f32 v{76+bb}, 1.0, v{z}")
            if mimic: rbf(76+bb)
        a(f"""
        v_mov_b32 v72, 0
        ds_write_b128 v72, v[74:77] offset:{L_G}
        ds_write_b32 v72, v72 offset:{L_G+16}
        s_waitcnt lgkmcnt(0)
        """)
    def slot_offset():
        a(f"""
        v_lshrrev_b32 v7, 1, v2
        v_lshlrev_b32 v7, 9, v7              ; bb*512
        v_and_b32 v5, 1, v2
        v_lshl_add_u32 v7, v5, 4, v7
        v_lshl_add_u32 v7, v3, 5, v7
        """)
    a(f"""
    s_lshl_b32 s57, s31, 2
    s_add_u32 s57, s57, s32
    s_lshl_b32 s60, s30, 3
    s_add_u32 s60, s60, s57
    s_cmp_eq_u32 s3, {99 if x_noq else 0}
    s_cbranch_scc0 L_a_notw0
    s_mul_i32 s57, s57, 80
    v_mad_u32_u24 v4, v2, 20, s57
    v_lshrrev_b32 v6, 3, v3
    v_mul_u32_u24 v6, 1280, v6           ; bb*1280
    v_lshl_add_u32 v5, v4, 1, v6         ; x offset
    s_lshl_b32 s57, s30, 8
    v_lshlrev_b32 v4, 13, v4
    v_lshl_add_u32 v7, v3, 4, s57
    v_add_u32 v4, v4, v7
    s_mov_b32 s48, 0
    s_movk_i32 s49, 0x2000
    """)
    a("v_mov_b32 v55, v5")
    slot_offset()
    a(f"""
    v_mov_b32 v5, v55
    s_lshl_b32 s58, s60, 10
    s_add_u32 s58, s58, {WS_Q}
    s_lshl_b32 s56, s30, 13
    s_lshl_b32 s57, s31, 9
    s_add_u32 s56, s56, s57
    s_add_u32 s56, s56, {WS_Q}
    s_add_u32 s57, s56, 4096
    v_lshlrev_b32 v6, 3, v1
    s_waitcnt lgkmcnt(0)
    """)
    srd(40, 28, 29, hex(WS_SIZE))
    if x_late:
        a(f"s_cmp_eq_u32 s32, 3\n s_cbranch_scc0 L_x_nolate")
        for _ in range(x_late): a("s_sleep 127")
        a("L_x_nolate:")
    a(f"""
    buffer_load_dwordx4 v[28:31], v7, s[40:43], s58 offen sc1
    """)
    for rb in range(8):
        a(f"buffer_load_dwordx2 v[{80+2*rb}:{81+2*rb}], v6, s[40:43], {'s56' if rb < 4 else 's57'} offen offset:{(rb & 3)*1024} sc1")
    srd(44, 4, 5, 2560)
    srd(36, 10, 11, 5242880)
    for k in range(5): a(f"buffer_load_dwordx2 v[{44+2*k}:{45+2*k}], v5, s[44:47], 0 offen offset:{8*k}")
    for t in range(20):
        a(f"buffer_load_dwordx4 {wreg(t)}, v4, s[36:39], s48 offen{WF}")
        if t < 19: a("s_add_u32 s48, s48, s49")
    if a0: a("s_barrier")
    selectors()
    srd(64, 26, 27, 256)
    a(f"""
    s_mul_i32 s59, s30, {cstride}
    v_mov_b32 v54, s59
    s_mov_b32 s69, 0x10001
    s_waitcnt vmcnt(20)
    """)
    tile20()
    xstamp(0)
    a("v_lshlrev_b32 v5, 2, v1")
    for k in range(4): a(f"v_not_b32 v{28+k}, v{28+k}")
    for k in range(4): a(f"v_bfi_b32 v{24+k}, 1, v{28+k}, v{24+k}")
    a(f"""
    buffer_store_dwordx4 v[24:27], v7, s[40:43], s58 offen sc1
    s_mov_b32 s49, 0
L_a_qp:
    """)
    for rb in range(8):
        a(f"buffer_load_dwordx2 v[{64+2*rb}:{65+2*rb}], v6, s[40:43], {'s56' if rb < 4 else 's57'} offen offset:{(rb & 3)*1024} sc1")
    a("s_add_u32 s49, s49, 1\n s_waitcnt vmcnt(0)")
    for k in range(16): a(f"v_xor_b32 v{28 if k == 0 else 29}, v{64+k}, v{80+k}" + ("" if k == 0 else "\n v_and_b32 v28, v28, v29"))
    a(f"""
    v_and_b32 v28, {0 if x_forceslow else 1}, v28
    v_cmp_eq_u32 vcc, 0, v28
    s_cmp_ge_u32 s49, {spin_max}
    s_cbranch_scc1 L_a_q_got
    s_cbranch_vccz L_a_q_got
    {"s_sleep %d" % qsleep if qsleep else ""}
    s_cmp_lt_u32 s49, 6
    s_cbranch_scc1 L_a_qp
    s_cmp_eq_u32 s49, 6
    s_cbranch_scc0 L_a_q_noset
    v_mov_b32 v28, {OOB:#x}
    v_cmp_eq_u32 vcc, 0, v1
    v_cndmask_b32 v28, v28, v54, vcc
    v_mov_b32 v29, 1
    buffer_atomic_add v29, v28, s[64:67], 0 offen sc1
    s_mov_b32 s69, 0x10000
L_a_q_noset:
    buffer_load_dword v28, v54, s[64:67], 0 offen sc1
    s_waitcnt vmcnt(0)
    v_and_b32 v28, 0xffff, v28
    s_nop 0
    v_readfirstlane_b32 s55, v28
    s_cmp_ge_u32 s55, 8
    s_cbranch_scc1 L_a_q_flagged
    s_sleep 8
    s_branch L_a_qp
L_a_q_flagged:
    """)
    for rb in range(8):
        a(f"buffer_load_dwordx2 v[{64+2*rb}:{65+2*rb}], v6, s[40:43], {'s56' if rb < 4 else 's57'} offen offset:{(rb & 3)*1024} sc1")
    a("s_waitcnt vmcnt(0)\nL_a_q_got:")
    xstamp(1)
    if stamps: a("s_mov_b32 s92, s49")
    for k in range(16): a(f"v_and_b32 v{64+k}, -2, v{64+k}")
    for k in range(2):
        a(f"""
        v_add_f32 v{64+k}, v{64+k}, v{66+k}
        v_add_f32 v{68+k}, v{68+k}, v{70+k}
        v_add_f32 v{72+k}, v{72+k}, v{74+k}
        v_add_f32 v{76+k}, v{76+k}, v{78+k}
        v_add_f32 v{64+k}, v{64+k}, v{68+k}
        v_add_f32 v{72+k}, v{72+k}, v{76+k}
        v_add_f32 v{64+k}, v{64+k}, v{72+k}
        """)
    a(f"""
    v_cvt_pk_bf16_f32 v64, v64, v65
    ds_write_b32 v5, v64 offset:{L_QB}
    s_waitcnt lgkmcnt(0)
    s_branch L_a_barA
L_a_notw0:
    """)
    if a0: a("s_barrier")
    a(f"""
    s_waitcnt lgkmcnt(0)
    """)
    srd(44, 4, 5, 2560)
    srd(40, 28, 29, hex(WS_SIZE))
    srd(64, 26, 27, 256)
    tau_fg()
    a(f"""
    s_cmp_eq_u32 s3, 2
    s_cbranch_scc0 L_a_noclear
    v_mov_b32 v64, {SENT:#x}
    v_mov_b32 v65, v64
    v_mov_b32 v66, v64
    v_mov_b32 v67, v64
    v_lshlrev_b32 v68, 4, v1
    s_mul_i32 s56, s34, 2560
    v_mov_b32 v70, {OOB:#x}
    v_cmp_gt_u32 vcc, 32, v1
    v_cndmask_b32 v69, v70, v68, vcc
    buffer_store_dwordx4 v[64:67], v68, s[40:43], s56 offen sc1
    buffer_store_dwordx4 v[64:67], v68, s[40:43], s56 offen offset:1024 sc1
    buffer_store_dwordx4 v[64:67], v69, s[40:43], s56 offen offset:2048 sc1
    """)
    if opt_h: a(f"""
    s_lshl_b32 s56, s34, 11
    s_add_u32 s56, s56, {WS_O}
    buffer_store_dwordx4 v[64:67], v68, s[40:43], s56 offen sc1
    buffer_store_dwordx4 v[64:67], v68, s[40:43], s56 offen offset:1024 sc1
    """)
    a(f"""
    s_lshl_b32 s56, s34, 9
    s_add_u32 s56, s56, {WS_ML}
    v_cmp_gt_u32 vcc, 32, v1
    v_cndmask_b32 v69, v70, v68, vcc
    buffer_store_dwordx4 v[64:67], v69, s[40:43], s56 offen sc1
    s_cmp_lt_u32 s35, 224
    s_cbranch_scc0 L_a_noclear_f
    s_lshl_b32 s56, s35, 10
    s_add_u32 s56, s56, {WS_F1}
    buffer_store_dwordx4 v[64:67], v68, s[40:43], s56 offen sc1
L_a_noclear_f:
    """)
    if pretouch: a(f"""
    s_lshl_b32 s56, s33, 21
    s_lshl_b32 s57, s32, 19
    s_add_u32 s56, s56, s57
    s_add_u32 s68, s8, s56
    s_addc_u32 s69, s9, 0
    s_mov_b32 s70, 0x80000
    s_mov_b32 s71, 0x20000
    v_mov_b32 v71, 0
    v_mov_b32 v72, 0x7fffc
    buffer_load_dword v73, v71, s[68:71], 0 offen nt
    buffer_load_dword v74, v72, s[68:71], 0 offen nt
    s_mov_b32 s68, s12
    s_mov_b32 s69, s13
    s_mov_b32 s70, 5242880
    s_mul_i32 s56, s30, {128*1280}
    buffer_load_dword v75, v71, s[68:71], s56 offen nt
    s_mov_b32 s68, s20
    s_mov_b32 s69, s21
    s_mov_b32 s70, {1728*1280}
    s_mul_i32 s56, s61, {16*1280}
    buffer_load_dword v76, v71, s[68:71], s56 offen nt
    """)
    a(f"""
    s_waitcnt vmcnt(0)
L_a_noclear:
    s_cmp_eq_u32 s3, 3
    s_cbranch_scc0 L_a_nogate
    """)
    gates()
    a("L_a_nogate:")
    selectors()
    a(f"""
L_a_barA:
    s_barrier
    """)
    stamp(1)
    a(f"""
    s_cmp_eq_u32 s3, 0
    s_cbranch_scc0 L_a_notw0b
    v_mov_b32 v68, {OOB:#x}
    v_cmp_eq_u32 vcc, 0, v1
    v_cndmask_b32 v68, v68, v54, vcc
    v_mov_b32 v69, s69
    {"s_nop 0" if x_noflag else "buffer_atomic_add v69, v68, s[64:67], 0 offen sc1"}
    """)
    tau_fg()
    a(f"""
L_a_notw0b:
    s_cmp_eq_u32 s3, 1
    s_cbranch_scc0 L_a_notw1
    s_cmp_lt_u32 s35, 224
    s_cbranch_scc0 L_a_notw1
    s_and_b32 s57, s35, 7
    s_mul_i32 s57, s57, 80
    v_mad_u32_u24 v64, v2, 20, s57
    v_lshrrev_b32 v6, 3, v3
    v_mul_u32_u24 v6, 1280, v6
    v_lshl_add_u32 v65, v64, 1, v6       ; x offset
    v_mul_u32_u24 v64, 3456, v64
    s_lshr_b32 s57, s35, 3               ; m*14 + cb
    s_cmp_ge_u32 s57, 14
    s_cselect_b32 s36, s18, s16
    s_cselect_b32 s37, s19, s17
    s_cselect_b32 s56, 14, 0
    s_sub_u32 s57, s57, s56
    s_lshl_b32 s57, s57, 8               ; cb*256
    s_mov_b32 s38, 2211840
    s_mov_b32 s39, 0x20000
    v_lshl_add_u32 v66, v3, 4, s57
    v_add_u32 v64, v64, v66
    s_mov_b32 s48, 0
    s_movk_i32 s49, 3456
    """)
    for k in range(5): a(f"buffer_load_dwordx2 v[{44+2*k}:{45+2*k}], v65, s[44:47], 0 offen offset:{8*k}")
    for t in range(20):
        a(f"buffer_load_dwordx4 {wreg(t)}, v64, s[36:39], s48 offen{WF}")
        if t < 19: a("s_add_u32 s48, s48, s49")
    slot_offset()
    a(f"""
    s_lshl_b32 s57, s35, 10
    s_add_u32 s57, s57, {WS_F1}
    s_waitcnt vmcnt(20)
    """)
    tile20()
    for k in range(4): a(f"v_min_u32 v{24+k}, 0xfffffffe, v{24+k}")
    a(f"""
    buffer_store_dwordx4 v[24:27], v7, s[40:43], s57 offen sc1
L_a_notw1:
    """)
    ts(1)
    a(f"""
    v_mov_b32 v72, 0
    ds_read_b128 v[64:67], v72 offset:{L_G}
    s_waitcnt lgkmcnt(0)
    v_readfirstlane_b32 s62, v64
    v_readfirstlane_b32 s63, v65
    v_readfirstlane_b32 s50, v66
    v_readfirstlane_b32 s51, v67
    """)
    if opt_h:
        srd(36, 12, 13, 5242880)
        a(f"""
    s_lshl_b32 s56, s30, 7
    s_lshl_b32 s57, s32, 5
    s_add_u32 s56, s56, s57
    s_lshl_b32 s57, s3, 3
    s_add_u32 s56, s56, s57
    v_lshl_add_u32 v4, v2, 1, s56        ; row
    v_mul_u32_u24 v4, 1280, v4
    v_lshl_add_u32 v4, v3, 4, v4
    s_movk_i32 s48, 1280
    """)
        for rg in range(2):
            for cb in range(5):
                a(f"buffer_load_dwordx4 {wreg(rg*5+cb)}, v4, s[36:39], {'0' if rg == 0 else 's48'} offen offset:{cb*256}{WOF}")
    else:
        srd(36, 12, 13, 5242880)
        a(f"""
    s_lshl_b32 s56, s30, 7
    s_lshl_b32 s57, s3, 5
    s_add_u32 s56, s56, s57
    v_lshl_add_u32 v4, v2, 3, s56        ; row = h*128 + 32v + 8g
    v_mul_u32_u24 v4, 1280, v4
    v_lshl_add_u32 v4, v3, 4, v4
    """)
        for rg in range(8):
            a(f"s_movk_i32 s48, {rg*1280}")
            for cb in range(5):
                if rg*5+cb >= wo_n: continue
                a(f"buffer_load_dwordx4 {wreg(rg*5+cb)}, v4, s[36:39], s48 offen offset:{cb*256}{WOF}")
                if wo_pace and (rg*5+cb) >= wo_pace-1: a(f"s_waitcnt vmcnt({wo_pace-1})")
    stamp(2)
    srd(36, 20, 21, 1728*1280)
    a(f"""
    s_cmp_lt_u32 s61, 108
    s_cbranch_scc0 L_a_nowd
    s_lshl_b32 s56, s61, 4
    s_lshl_b32 s57, s3, 2
    s_add_u32 s56, s56, s57
    v_add_u32 v4, s56, v2
    v_mul_u32_u24 v4, 1280, v4
    v_lshl_add_u32 v4, v3, 4, v4
    """)
    for cb in range(5): a(f"buffer_load_dwordx4 v[{64+4*cb}:{67+4*cb}], v4, s[36:39], 0 offen offset:{cb*256}{WDF}")
    a("L_a_nowd:")
    ts(2)
    if x_noflag or x_nocheck & 1: a("s_branch L_a_all_done")
    if ldsconf: a(f"""
    s_cmp_eq_u32 s3, 0
    s_cbranch_scc1 L_a_all0
    v_mov_b32 v87, 0
    s_mov_b32 s49, 0
L_a_conf:
    ds_read_b32 v88, v87 offset:{L_G+16}
    s_add_u32 s49, s49, 1
    s_waitcnt lgkmcnt(0)
    v_readfirstlane_b32 s56, v88
    s_cmp_ge_u32 s49, {spin_max*16}
    s_cbranch_scc1 L_a_all_done
    s_cmp_lg_u32 s56, 0
    s_cbranch_scc1 L_a_all_done
    s_sleep 4
    s_branch L_a_conf
L_a_all0:
    """)
    a(f"""
    v_and_b32 v87, 31, v1
    v_mul_u32_u24 v87, {cstride}, v87
    v_mov_b32 v86, 0x80000
    s_mov_b32 s49, 0
L_a_all:
    buffer_load_dword v88, v87, s[64:67], 0 offen sc1
    s_add_u32 s49, s49, 1
    s_waitcnt vmcnt(0)
    v_cmp_gt_u32 vcc, v86, v88
    s_cmp_ge_u32 s49, {spin_max}
    s_cbranch_scc1 L_a_all_ok
    s_cbranch_vccz L_a_all_ok
    s_sleep 64
    s_branch L_a_all
L_a_all_ok:
    """)
    if ldsconf: a(f"""
    v_mov_b32 v87, 0
    v_mov_b32 v88, 1
    ds_write_b32 v87, v88 offset:{L_G+16}
    """)
    a(f"""
L_a_all_done:
    """)
    if stamps: a("s_mov_b32 s95, s49")
    ts(3)
    if stamps: a("v_writelane_b32 v63, s95, 10")
    for k in range(20): a(f"v_mov_b32 v{24+k}, 0")
    a(f"""
    s_cmp_lt_u32 s61, 108
    s_cbranch_scc0 L_a_noffn2
    s_lshr_b32 s56, s61, 3               ; cb = f >> 7
    s_lshl_b32 s56, s56, 13
    s_lshl_b32 s57, s31, 9
    s_add_u32 s56, s56, s57
    s_and_b32 s57, s61, 7
    s_lshl_b32 s57, s57, 6
    s_add_u32 s56, s56, s57
    s_lshl_b32 s57, s3, 4
    s_add_u32 s56, s56, s57
    s_add_u32 s56, s56, {WS_F1}          ; + (16 (fg&7) + 4v)*4
    v_and_b32 v86, 7, v3
    v_lshlrev_b32 v86, 10, v86           ; rb*1024
    v_lshrrev_b32 v87, 3, v3
    v_mul_u32_u24 v87, {14*8*1024}, v87  ; matrix
    v_add_u32 v86, v86, v87
    v_lshl_add_u32 v86, v2, 2, v86       ; + g*4
    v_mov_b32 v44, 0
    s_mov_b32 s49, 0
L_a_f1:
    buffer_load_dword v88, v86, s[40:43], s56 offen sc1
    s_add_u32 s49, s49, 1
    s_waitcnt vmcnt(0)
    v_cmp_eq_u32 vcc, -1, v88
    s_cmp_ge_u32 s49, {spin_max}
    s_cbranch_scc1 L_a_f1_done
    s_cbranch_vccz L_a_f1_done
    s_sleep 16
    s_branch L_a_f1
L_a_f1_done:
    """)
    if stamps: a("s_mov_b32 s95, s49")
    ts(4)
    if stamps: a("v_writelane_b32 v63, s95, 11")
    a(f"""
    v_add_f32_dpp v88, v88, v88 quad_perm:[1,0,3,2] {FULL}
    v_add_f32_dpp v88, v88, v88 quad_perm:[2,3,0,1] {FULL}
    v_add_f32_dpp v88, v88, v88 row_half_mirror {FULL}
    v_mov_b32_dpp v89, v88 row_ror:8 {FULL}
    """)
    if mimic: rbf(88); rbf(89)
    a(f"""
    v_mul_f32 v90, {f2u(-LOG2E):#x}, v88
    v_exp_f32 v90, v90
    v_add_f32 v90, 1.0, v90
    v_rcp_f32 v90, v90
    v_mul_f32 v90, v90, v88
    """)
    if mimic: rbf(90)
    a(f"""
    v_mul_f32 v90, v90, v89
    s_mov_b32 exec_lo, 0x00ff00ff
    s_mov_b32 exec_hi, 0x00ff00ff
    v_cvt_pk_bf16_f32 v44, v90, v90
    s_mov_b64 exec, -1
    """)
    perms(16, 44, 8)
    for cb in range(5): mfma(24+4*cb, 16, f"v[{64+4*cb}:{67+4*cb}]")
    a("s_cmp_eq_u32 s31, 0\n s_cselect_b32 s56, s50, s51")
    for k in range(20): a(f"v_mul_f32 v{24+k}, s56, v{24+k}")
    a("L_a_noffn2:")
    ts(5)
    if opt_h:
        a(f"""
    s_cmp_eq_u32 s31, 0
    s_cselect_b32 s68, s62, s63
    s_lshl_b32 s54, s33, 13
    s_add_u32 s54, s54, {WS_O}
    s_lshl_b32 s55, s32, 7
    s_add_u32 s54, s54, s55
    s_lshl_b32 s55, s3, 5
    s_add_u32 s54, s54, s55              ; + (32 split + 8 v)*4
    v_lshlrev_b32 v6, 9, v3
    v_lshl_add_u32 v6, v2, 3, v6         ; + 2g*4
    v_add_u32 v6, s54, v6
    v_mov_b32 v44, 0
    s_mul_i32 s54, s3, 2560
    v_lshlrev_b32 v7, 5, v3
    v_lshl_add_u32 v7, v2, 4, v7
    v_add_u32 v7, s54, v7
    s_waitcnt vmcnt(0)
    """)
    else:
        a(f"""
    s_cmp_eq_u32 s31, 0
    s_cselect_b32 s68, s62, s63
    s_lshl_b32 s54, s3, 7
    v_lshl_add_u32 v6, v2, 5, s54
    v_mov_b32 v44, 0x0c0c0c0c
    v_cmp_gt_u32 vcc, 8, v3
    v_cndmask_b32 v48, v44, v8, vcc
    v_cndmask_b32 v49, v44, v9, vcc
    v_cndmask_b32 v50, v44, v10, vcc
    v_cndmask_b32 v51, v44, v11, vcc
    v_cndmask_b32 v52, v44, v12, vcc
    v_cndmask_b32 v53, v44, v13, vcc
    v_cndmask_b32 v54, v44, v14, vcc
    v_cndmask_b32 v55, v44, v15, vcc
    s_mul_i32 s54, s3, 2560
    v_lshlrev_b32 v7, 5, v3
    v_lshl_add_u32 v7, v2, 4, v7
    v_add_u32 v7, s54, v7
    s_waitcnt vmcnt(0)
    """)
    stamp(3)
    a("s_barrier")
    stamp(4)
    if opt_h:
        a(f"""
    s_mov_b32 s49, 0
L_a_o:
    buffer_load_dwordx2 v[64:65], v6, s[40:43], 0 offen sc1
    s_add_u32 s49, s49, 1
    s_waitcnt vmcnt(0)
    v_max_u32 v66, v64, v65
    v_cmp_eq_u32 vcc, -1, v66
    s_cmp_ge_u32 s49, {spin_max}
    s_cbranch_scc1 L_a_o_done
    s_cbranch_vccnz L_a_o
L_a_o_done:
    """)
        for rr in (8, 4, 2, 1):
            a(f"v_add_f32_dpp v64, v64, v64 row_ror:{rr} {FULL}\n v_add_f32_dpp v65, v65, v65 row_ror:{rr} {FULL}")
        a(f"""
    s_mov_b32 exec_lo, 0x00ff00ff
    s_mov_b32 exec_hi, 0x00ff00ff
    v_cvt_pk_bf16_f32 v44, v64, v65
    s_mov_b64 exec, -1
    """)
        perms(16, 44, 8)
        perms(20, 44, 12)
        for cb in range(5): mfma(24+4*cb, 16, wreg(cb))
        for cb in range(5): mfma(24+4*cb, 20, wreg(5+cb))
    else:
        for hh in range(2):
            for w in range(4):
                a(f"ds_read_b128 v[{64+8*w+4*hh}:{67+8*w+4*hh}], v6 offset:{L_OP+512*w+16*hh}")
        def osum(k0):
            for k in range(k0, k0+4): a(f"v_add_f32 v{64+k}, v{64+k}, v{72+k}\n v_add_f32 v{80+k}, v{80+k}, v{88+k}")
            for k in range(k0, k0+4): a(f"v_add_f32 v{64+k}, v{64+k}, v{80+k}")
            for r in range(k0//2, k0//2+2): a(f"v_cvt_pk_bf16_f32 v{44+r}, v{64+2*r}, v{65+2*r}")
        def pm(rg, r):
            A = 16 + 4*(rg & 1)
            a(f"v_perm_b32 v{A+r}, v{44+(rg >> 1)}, v{44+(rg >> 1)}, v{48+4*(rg & 1)+r}")
        lgkm(4)
        osum(0)
        for r in range(4): pm(0, r)
        extra = []
        for rg in range(8):
            A = 16 + 4*(rg & 1)
            for cb in range(5):
                mfma(24+4*cb, A, wreg(rg*5+cb))
                if rg == 1 and cb == 0:
                    lgkm(0); osum(4)
                if rg < 7 and cb < 4: pm(rg+1, cb)
    a("s_mov_b32 exec_hi, 0")
    for cb in range(5): a(f"ds_write_b128 v7, v[{24+4*cb}:{27+4*cb}] offset:{L_YP+cb*512}")
    a(f"""
    s_mov_b32 exec_hi, -1
    s_waitcnt lgkmcnt(0)
    s_barrier
    s_branch L_pub
    """)
    a(f"""
L_stream:
    """)
    if prio: a(f"s_setprio {prio}")
    if stamps: a("s_memtime s[88:89]")
    a(f"""
    s_sub_u32 s57, s3, 4
    s_lshl_b32 s56, s33, 21
    s_lshl_b32 s58, s32, 19
    s_add_u32 s56, s56, s58
    v_lshlrev_b32 v4, 4, v1          ; lane*16
    s_lshr_b32 s58, s2, 3
    s_mul_i32 s58, s58, {ra}
    s_and_b32 s59, s2, 7
    s_mul_i32 s59, s59, {rx}
    s_add_u32 s58, s58, s59
    s_lshl_b32 s58, s58, {ru}
    s_lshl_b32 s59, s57, 12
    s_add_u32 s48, s58, s59
    s_and_b32 s48, s48, 0x7ffff
    v_mov_b32 v14, {OOB:#x}
    s_lshl_b32 s59, s34, 2
    s_add_u32 s59, s59, s57
    s_lshl_b32 s59, s59, 7
    s_add_u32 s59, s59, {WS_ML}
    v_lshl_add_u32 v47, v1, 3, s59
    v_cmp_gt_u32 vcc, 16, v1
    v_cndmask_b32 v47, v14, v47, vcc
    s_waitcnt lgkmcnt(0)
    s_add_u32 s36, s6, s56
    s_addc_u32 s37, s7, 0
    s_mov_b32 s38, 0x80000
    s_mov_b32 s39, 0x20000
    s_add_u32 s44, s8, s56
    s_addc_u32 s45, s9, 0
    """)
    srd(40, 28, 29, hex(WS_SIZE))
    srd(64, 26, 27, 256)
    if a0: a("s_barrier")
    VF = SF if vflag is None else ((" " + vflag) if vflag else "")
    def sload(s, fl=None):
        a(f"buffer_load_dwordx4 {ring(s)}, v4, s[36:39], s48 offen offset:{(s&3)*1024}{SF if fl is None else fl}")
        if (s & 3) == 3: a("s_add_u32 s48, s48, 0x4000\n s_and_b32 s48, s48, 0x7ffff")
    for s in range(depth):
        if thr and s >= thr: a(f"s_waitcnt vmcnt({thr-1})")
        sload(s)
    a(f"""
    v_and_b32 v32, 1, v3
    v_mov_b32 v33, 0xffff
    v_mov_b32 v34, 0xffff0000
    v_cmp_eq_u32 vcc, 1, v32
    v_cndmask_b32 v33, v33, v34, vcc
    v_lshrrev_b32 v32, 1, v3              ; c>>1
    """)
    for r in range(4):
        a(f"v_cmp_eq_u32 vcc, {r}, v32\n v_cndmask_b32 v{16+r}, 0, v33, vcc")
    Q = 80
    a(f"""
    s_mov_b32 s50, 0xaaaaaaaa
    s_mov_b32 s51, 0xaaaaaaaa
    s_mov_b32 s52, 0xcccccccc
    s_mov_b32 s53, 0xcccccccc
    v_lshlrev_b32 v46, 4, v3
    s_barrier
    """)
    stamp(1)
    a(f"""
    ds_read_b128 v[{Q}:{Q+3}], v46 offset:{L_QB}
    s_lshl_b32 s59, s31, 2
    v_mov_b32 v56, s59
    ds_read_b32 v56, v56 offset:{L_G}
    s_mov_b32 s49, 0
    s_waitcnt lgkmcnt(0)
L_kloop:
    """)
    Pa, Pb, Qe, Qo, T0, T1, t1, t2 = 32, 33, 36, 37, 40, 41, 42, 43
    R = [38, 39, 34, 35]
    U = [44, 45]
    ngroups = depth//16
    assert depth in (16, 32)
    for grp in range(ngroups):
        for k in range(8):
            for half, P in ((0, Pa), (1, Pb)):
                s = grp*16 + 2*k + half
                if not thr: a(f"s_waitcnt vmcnt({depth-1})")
                a(f"v_mov_b32 v{P}, 0")
                if x_nok: a(f"v_add_u32 v{P}, {ringr(s, 0)}, v{Q}")
                else:
                    for r in range(4): a(f"v_dot2c_f32_bf16 v{P}, {ringr(s, r)}, v{Q+r}")
                if thr: a(f"s_waitcnt vmcnt({thr-1})")
                sload(s)
            if x_nok == 2: continue
            Qx = Qe if k % 2 == 0 else Qo
            a(f"v_add_f32_dpp v{Qx}, v{Pa}, v{Pa} row_ror:8 row_mask:0xf bank_mask:0x3")
            a(f"v_add_f32_dpp v{Qx}, v{Pb}, v{Pb} row_ror:8 row_mask:0xf bank_mask:0xc")
            if k % 2 == 1:
                Rx = R[k >> 1]
                a(f"v_add_f32_dpp v{Rx}, v{Qe}, v{Qe} row_shl:4 row_mask:0xf bank_mask:0x5")
                a(f"v_add_f32_dpp v{Rx}, v{Qo}, v{Qo} row_shr:4 row_mask:0xf bank_mask:0xa")
            if k in (3, 7):
                Re, Ro = (R[0], R[1]) if k == 3 else (R[2], R[3])
                T = T0 if k == 3 else T1
                a(f"v_add_f32_dpp v{t1}, v{Re}, v{Re} quad_perm:[2,3,0,1] {FULL}")
                a(f"v_add_f32_dpp v{t2}, v{Ro}, v{Ro} quad_perm:[2,3,0,1] {FULL}")
                a(f"v_cndmask_b32 v{T}, v{t1}, v{t2}, s[52:53]")
        a(f"v_add_f32_dpp v{t1}, v{T0}, v{T0} quad_perm:[1,0,3,2] {FULL}")
        a(f"v_add_f32_dpp v{t2}, v{T1}, v{T1} quad_perm:[1,0,3,2] {FULL}")
        a(f"v_cndmask_b32 v{U[grp]}, v{t1}, v{t2}, s[50:51]")
    niter = 128//depth
    for k in range(8-ngroups): a(f"v_mov_b32 v{8+k}, v{8+k+ngroups}")
    for gidx in range(ngroups): a(f"v_mov_b32 v{8+8-ngroups+gidx}, v{U[gidx]}")
    a(f"""
    """)
    ts_dyn(16)
    a(f"""
    s_add_u32 s49, s49, 1
    s_cmp_eq_u32 s49, {niter-1}
    s_cselect_b32 s36, s44, s36
    s_cselect_b32 s37, s45, s37
    s_cmp_lt_u32 s49, {niter}
    s_cbranch_scc1 L_kloop
    """)
    stamp(2)
    c1 = f2u(128**-0.5*LOG2E)
    a(f"""
    v_max3_f32 v32, v8, v9, v10
    v_max3_f32 v32, v32, v11, v12
    v_max3_f32 v32, v32, v13, v14
    v_max_f32 v32, v32, v15
    """)
    allreduce("v_max_f32", 32)
    a(f"v_mov_b32 v33, {c1:#x}\n v_mul_f32 v32, v33, v32")
    for k in range(8): a(f"v_fma_f32 v{8+k}, v{8+k}, v33, -v32")
    for k in range(8): a(f"v_exp_f32 v{8+k}, v{8+k}")
    a(f"""
    v_add_f32 v34, v8, v9
    v_add_f32 v35, v10, v11
    v_add_f32 v36, v12, v13
    v_add_f32 v37, v14, v15
    v_add_f32 v34, v34, v35
    v_add_f32 v36, v36, v37
    v_add_f32 v34, v34, v36
    """)
    allreduce("v_add_f32", 34)
    for k in range(8): a(f"v_cvt_pk_bf16_f32 v{8+k}, v{8+k}, v{8+k}")
    a(f"""
    v_min_u32 v36, 0xfffffffe, v32
    v_min_u32 v37, 0xfffffffe, v34
    {"s_nop 0" if x_noml else "buffer_store_dwordx2 v[36:37], v47, s[40:43], 0 offen sc1"}
    v_mov_b32 v28, 0
    v_mov_b32 v29, 0
    v_mov_b32 v30, 0
    v_mov_b32 v31, 0
    """)
    if opt_h: a(f"""
    s_lshl_b32 s58, s34, 2
    s_add_u32 s58, s58, s57
    s_lshl_b32 s58, s58, 9
    s_add_u32 s58, s58, {WS_O}
    v_lshlrev_b32 v46, 5, v3             ; c*32
    v_lshl_add_u32 v46, v2, 4, v46       ; + lg*16
    v_add_u32 v46, s58, v46
    v_mov_b32 v55, {OOB:#x}
    v_cmp_gt_u32 vcc, 32, v1
    v_cndmask_b32 v46, v55, v46, vcc
    """)
    else: a(f"""
    s_lshl_b32 s58, s57, 9
    v_lshlrev_b32 v46, 5, v3             ; c*32
    v_lshl_add_u32 v46, v2, 4, v46       ; + lg*16
    v_add_u32 v46, s58, v46
    """)
    a(f"""
    v_and_b32 v48, 31, v1
    v_mul_u32_u24 v48, {cstride}, v48
    v_mov_b32 v49, 0x80000
    s_lshl_b32 s58, s33, 11
    s_add_u32 s58, s58, {WS_ML}
    v_lshl_add_u32 v51, v3, 7, s58
    s_mov_b32 s49, 0
L_vloop:
    """)
    def vpos(s, last):
        t = s & 15
        c = 4*rev2(t & 3) + rev2(t >> 2)
        P = 8 + (s >> 4)
        A = 20 + 4*(s & 1)
        a(f"s_waitcnt vmcnt({depth-1-s if last else depth-1})")
        if x_nov: a(f"v_add_u32 v28, {ringr(s, 0)}, v28")
        else:
            for r in range(4): a(f"v_and_b32_dpp v{A+r}, v{P}, v{16+r} row_newbcast:{c} {FULL}")
            mfma(28, A, ring(s))
        if not last:
            if vthr: a(f"s_waitcnt vmcnt({vthr-1})")
            sload(s, VF)
    for s_ in range(depth): vpos(s_, False)
    for k in range(8-ngroups): a(f"v_mov_b32 v{8+k}, v{8+k+ngroups}")
    ts_dyn(32)
    i_flag, i_ml = (niter-4, niter-3) if not x_noml else (99, 99)
    if (x_noflag or x_nocheck & 2) and not x_noml: i_flag = 99
    if ldsconf and not (x_noflag or x_nocheck & 2): a(f"""
    s_cmp_eq_u32 s49, {i_ml}
    s_cbranch_scc0 L_v_n2
    s_mov_b32 s59, 0
    v_mov_b32 v50, 0
L_v_fl:
    ds_read_b32 v49, v50 offset:{L_G+16}
    s_add_u32 s59, s59, 1
    s_waitcnt lgkmcnt(0)
    v_readfirstlane_b32 s58, v49
    s_cmp_ge_u32 s59, {spin_max*16}
    s_cbranch_scc1 L_v_fl_done
    s_cmp_lg_u32 s58, 0
    s_cbranch_scc1 L_v_fl_done
    s_sleep 4
    s_branch L_v_fl
    """)
    else:
        a(f"""
    s_cmp_eq_u32 s49, {i_flag}
    s_cbranch_scc0 L_v_n1
    buffer_load_dword v50, v48, s[64:67], 0 offen sc1
L_v_n1:
    s_cmp_eq_u32 s49, {i_ml}
    s_cbranch_scc0 L_v_n2
    s_mov_b32 s59, {spin_max if (x_noflag or x_nocheck & 2) else 0}
    s_waitcnt vmcnt({depth})
L_v_fl:
    v_cmp_gt_u32 vcc, v49, v50
    s_add_u32 s59, s59, 1
    s_cmp_ge_u32 s59, {spin_max}
    s_cbranch_scc1 L_v_fl_done
    s_cbranch_vccz L_v_fl_done
    s_sleep 32
    buffer_load_dword v50, v48, s[64:67], 0 offen sc1
    s_waitcnt vmcnt(0)
    s_branch L_v_fl
    """)
    a(f"""
L_v_fl_done:
    buffer_load_dwordx2 v[52:53], v51, s[40:43], 0 offen sc1
L_v_n2:
    s_add_u32 s49, s49, 1
    s_cmp_lt_u32 s49, {niter-1}
    s_cbranch_scc1 L_vloop
    s_mov_b32 s59, {spin_max if x_noml else 0}
    s_waitcnt vmcnt({depth})
L_v_ml:
    v_max_u32 v54, v52, v53
    v_cmp_eq_u32 vcc, -1, v54
    s_add_u32 s59, s59, 1
    s_cmp_ge_u32 s59, {spin_max}
    s_cbranch_scc1 L_v_ml_done
    s_cbranch_vccz L_v_ml_done
    s_sleep 8
    buffer_load_dwordx2 v[52:53], v51, s[40:43], 0 offen sc1
    s_waitcnt vmcnt(0)
    s_branch L_v_ml
L_v_ml_done:
    v_mov_b32 v54, v52
    """)
    for rr in (8, 4, 2, 1): a(f"v_max_f32_dpp v54, v54, v54 row_ror:{rr} {FULL}")
    a("v_sub_f32 v52, v52, v54\n v_exp_f32 v52, v52\n v_mul_f32 v53, v52, v53")
    for rr in (8, 4, 2, 1): a(f"v_add_f32_dpp v53, v53, v53 row_ror:{rr} {FULL}")
    a(f"""
    v_rcp_f32 v53, v53
    s_lshl_b32 s59, s32, 2
    s_add_u32 s59, s59, s57
    v_mul_f32 v52, v52, v53
    v_mul_f32 v52, v52, v56
    s_nop 0
    v_readlane_b32 s68, v52, s59
    """)
    for s_ in range(depth): vpos(s_, True)
    ts(35)
    if stamps: a("s_memtime s[90:91]")
    for k in range(4): a(f"v_mul_f32 v{28+k}, s68, v{28+k}")
    if opt_h:
        for k in range(4): a(f"v_min_u32 v{28+k}, 0xfffffffe, v{28+k}")
        a("buffer_store_dwordx4 v[28:31], v46, s[40:43], 0 offen sc1")
        stamp(3)
        a("s_barrier")
    else:
        stamp(3)
        a(f"""
    s_mov_b32 exec_hi, 0
    ds_write_b128 v46, v[28:31] offset:{L_OP}
    s_mov_b32 exec_hi, -1
    s_waitcnt lgkmcnt(0)
    s_barrier
    """)
    stamp(4)
    a("s_barrier\nL_pub:")
    stamp(5)
    a(f"""
    s_cmp_ge_u32 s3, 3
    s_cbranch_scc1 L_nopub
    v_lshlrev_b32 v46, 4, v0
    """)
    for w in range(4): a(f"ds_read_b128 v[{64+4*w}:{67+4*w}], v46 offset:{L_YP+2560*w}")
    a(f"""
    s_mul_i32 s54, s34, 2560
    v_add_u32 v47, s54, v46
    v_mov_b32 v45, {OOB:#x}
    v_cmp_gt_u32 vcc, 160, v0
    v_cndmask_b32 v47, v45, v47, vcc
    s_waitcnt lgkmcnt(0)
    """)
    for k in range(4): a(f"v_add_f32 v{64+k}, v{64+k}, v{68+k}\n v_add_f32 v{72+k}, v{72+k}, v{76+k}")
    for k in range(4): a(f"v_add_f32 v{64+k}, v{64+k}, v{72+k}")
    for k in range(4): a(f"v_min_u32 v{64+k}, 0xfffffffe, v{64+k}")
    a(f"""
    buffer_store_dwordx4 v[64:67], v47, s[40:43], 0 offen sc1
L_nopub:
    """)
    stamp(6)
    def out_addr():
        srd(64, 24, 25, 2560)
        a(f"""
        s_mul_i32 s56, s54, 1280
        s_lshl_b32 s57, s55, 5
        s_add_u32 s56, s56, s57
        v_lshrrev_b32 v61, 2, v1
        v_lshl_add_u32 v61, v61, 1, s56
        v_and_b32 v62, 3, v1
        v_mov_b32 v43, {OOB:#x}
        v_cmp_eq_u32 vcc, 0, v62
        v_cndmask_b32 v61, v43, v61, vcc
        """)
    a(f"""
    s_cmp_ge_u32 s2, {0 if x_nofinal else 80}
    s_cbranch_scc1 L_fin
    s_cmp_ge_u32 s2, 40
    s_cselect_b32 s54, 1, 0              ; batch
    s_mul_i32 s55, s54, 40
    s_sub_u32 s55, s2, s55
    v_lshrrev_b32 v44, 2, v0             ; i
    v_and_b32 v45, 3, v0                 ; cq
    s_lshl_b32 s56, s55, 6
    v_lshl_add_u32 v45, v45, 4, s56
    s_mul_i32 s56, s54, {128*2560}
    v_mul_u32_u24 v46, 2560, v44
    v_add3_u32 v46, v46, v45, s56        ; Y address
    s_mov_b32 s49, 0
    """)
    if gpipe:
        def chk(r, nxt):
            a(f"""
            s_waitcnt vmcnt(1)
            v_max_u32 v60, v{r}, v{r+1}
            v_max3_u32 v60, v60, v{r+2}, v{r+3}
            v_cmp_eq_u32 vcc, -1, v60
            s_andn2_b64 exec, exec, vcc
            v_mov_b32 v56, v{r}
            v_mov_b32 v57, v{r+1}
            v_mov_b32 v58, v{r+2}
            v_mov_b32 v59, v{r+3}
            s_mov_b64 exec, vcc
            s_cbranch_execz L_g_done
            buffer_load_dwordx4 v[{r}:{r+3}], v46, s[40:43], 0 offen sc1
            """)
        a(f"""
        buffer_load_dwordx4 v[48:51], v46, s[40:43], 0 offen sc1
        """)
        out_addr()
        a(f"""
        buffer_load_dwordx4 v[52:55], v46, s[40:43], 0 offen sc1
L_g:
        """)
        chk(48, 52)
        if gsleep: a(f"s_sleep {gsleep}")
        chk(52, 48)
        if gsleep: a(f"s_sleep {gsleep}")
        a(f"""
        s_add_u32 s49, s49, 1
        s_cmp_lt_u32 s49, {spin_max}
        s_cbranch_scc1 L_g
        """)
    else:
        a(f"""
L_g:
    buffer_load_dwordx4 v[48:51], v46, s[40:43], 0 offen sc1
    s_add_u32 s49, s49, 1
    s_waitcnt vmcnt(0)
    v_max_u32 v56, v48, v49
    v_max3_u32 v56, v56, v50, v51
    v_cmp_eq_u32 vcc, -1, v56
    s_cmp_ge_u32 s49, {spin_max}
    s_cbranch_scc1 L_g_done
    """)
        if gmask: a("s_and_b64 exec, exec, vcc\n s_cbranch_execnz L_g")
        else: a("s_cbranch_vccnz L_g")
    a(f"""
L_g_done:
    s_mov_b64 exec, -1
    """)
    R = 56 if gpipe else 48
    for rr in (8, 4):
        for k in range(4): a(f"v_add_f32_dpp v{R+k}, v{R+k}, v{R+k} row_ror:{rr} {FULL}")
    a(f"""
    v_lshlrev_b32 v44, 9, v3             ; cq*4*128
    s_lshl_b32 s56, s3, 4
    v_lshl_add_u32 v45, v2, 2, s56       ; (wave*4+row)*4
    v_add_u32 v44, v44, v45
    s_mov_b32 exec_lo, 0x000f000f
    s_mov_b32 exec_hi, 0x000f000f
    """)
    for k in range(4): a(f"ds_write_b32 v44, v{R+k} offset:{L_RP+128*k}")
    a(f"""
    s_mov_b64 exec, -1
    s_waitcnt lgkmcnt(0)
    s_barrier
    s_cmp_eq_u32 s3, 0
    s_cbranch_scc0 L_fin
    v_lshlrev_b32 v44, 5, v1
    ds_read_b128 v[64:67], v44 offset:{L_RP}
    ds_read_b128 v[68:71], v44 offset:{L_RP+16}
    """)
    if not gpipe: out_addr()
    a(f"""
    s_waitcnt lgkmcnt(0)
    v_add_f32 v64, v64, v65
    v_add_f32 v66, v66, v67
    v_add_f32 v68, v68, v69
    v_add_f32 v70, v70, v71
    v_add_f32 v64, v64, v66
    v_add_f32 v68, v68, v70
    v_add_f32 v64, v64, v68
    v_add_f32_dpp v64, v64, v64 quad_perm:[1,0,3,2] {FULL}
    v_add_f32_dpp v64, v64, v64 quad_perm:[2,3,0,1] {FULL}
    v_cvt_pk_bf16_f32 v64, v64, v64
    buffer_store_short v64, v61, s[64:67], 0 offen {oflag}
L_fin:
    """)
    if stamps:
        a(f"""
        s_memrealtime s[86:87]
        s_getreg_b32 s54, hwreg(HW_REG_XCC_ID)
        s_waitcnt lgkmcnt(0)
        s_lshl_b32 s55, s2, 3
        s_add_u32 s55, s55, s3
        s_lshl_b32 s55, s55, 6
        s_add_u32 s55, s55, {WS_STAMP}
        s_mov_b32 s40, s28
        s_mov_b32 s41, s29
        s_mov_b32 s42, 0x400000
        s_mov_b32 s43, 0x20000
        v_mov_b32 v48, s72
        v_mov_b32 v49, s74
        v_mov_b32 v50, s76
        v_mov_b32 v51, s78
        v_mov_b32 v52, s80
        v_mov_b32 v53, s82
        v_mov_b32 v54, s84
        v_mov_b32 v55, s86
        v_mov_b32 v56, s54
        v_mov_b32 v45, s55
        v_mov_b32 v43, {OOB:#x}
        v_cmp_eq_u32 vcc, 0, v1
        v_cndmask_b32 v45, v43, v45, vcc
        buffer_store_dwordx4 v[48:51], v45, s[40:43], 0 offen
        buffer_store_dwordx4 v[52:55], v45, s[40:43], 0 offen offset:16
        v_mov_b32 v57, s88
        v_mov_b32 v58, s90
        v_mov_b32 v59, s92
        buffer_store_dwordx4 v[56:59], v45, s[40:43], 0 offen offset:32
        s_lshl_b32 s55, s2, 3
        s_add_u32 s55, s55, s3
        s_lshl_b32 s55, s55, 8
        s_add_u32 s55, s55, {WS_STAMP + 0x40000}
        v_lshl_add_u32 v45, v1, 2, s55
        buffer_store_dword v63, v45, s[40:43], 0 offen
        """)
    a("L_end:\n s_endpgm")
    text, n = hz.fix(a.text())
    return wrap(text, 256, 512, LDS_BYTES, vgpr=256, sgpr=100, DESC=DESCRIPTION), n

if __name__ == "__main__":
    from build import build
    import json
    names = []
    for spec in sys.argv[1:]:
        kw = {}
        name, _, rest = spec.partition(":")
        for p in rest.split(","):
            if not p: continue
            k, v = p.split("=")
            kw[k] = v if k in ("sflag", "wflag", "woflag", "vflag", "wdflag", "oflag") else int(v, 0)
        for k in ("sflag", "wflag", "woflag", "vflag", "wdflag", "oflag"):
            if kw.get(k) == "none": kw[k] = ""
            if k in kw: kw[k] = kw[k].replace("+", " ")
        t, n = gen(**kw)
        open(f"work/{name}.s", "w").write(t)
        build(f"work/{name}.s")
        print(name, "nops inserted:", n, "lines:", t.count("\n"))
        names.append(name)
    print(json.dumps(["work/bench.py", "cdna_kernels/cdna_launch.py", "cdna_kernels/cdna_unwritten_srd_check.py", "gated_mix__mha_block_cached__swiglu_ffn__decode_np.py"] + sum([[f"work/{n}.co", f"work/{n}.s"] for n in names], [])))
```

```python
import sys, struct
sys.path.insert(0, "work")
from asmlib import *
import hz

SENT = 0xFFFFFFFF
OOB = 0x7FFF0000
WS_Y = 0
WS_ML = 0x19A000
WS_Q = 0xA2000
WS_F1 = 0xE2000
WS_O = 0x11A000
WS_SIZE = 0x1BA000
WS_STAMP = 0x200000
L_QB, L_G, L_OP, L_YP, L_RP = 0, 1024, 2048, 4096, 0
L_ST = L_YP
LDS_BYTES = 16384
LOG2E = 1.4426950408889634
def f2u(f): return struct.unpack("<I", struct.pack("<f", f))[0]
def rev2(x): return ((x & 1) << 1) | ((x >> 1) & 1)
FULL = "row_mask:0xf bank_mask:0xf"

DESCRIPTION = """;
;
"""

def gen(depth=32, sflag="nt", wflag="nt", woflag=None, stamps=0, spin_max=1 << 16, mimic=1, wo_pace=0, sleep=4, thr=6, vthr=0, wo_n=40, ml_delay=0, ml_sleep=16, hmap=0, ra=8, rx=1, ru=12, x_noflag=0, x_noml=0, x_noffn=0, a0=0, qsleep=0, opt_h=0, gmask=1, tail2=1, late=1, vflag=None, x_noq=0, x_nots=0, x_nocheck=0, ldsconf=1, cstride=8, wdflag=None, gpipe=0, prio=0, oflag='', swaproles=0, pretouch=0, x_nok=0, x_nov=0, x_nosm=0, x_nofinal=0, gsleep=0, x_exit=0, x_late=0, x_forceslow=0, ysflag='sc1', ylflag='sc1'):
    a = Asm()
    SF = (" " + sflag) if sflag else ""
    WF = (" " + wflag) if wflag else ""
    WOF = WF if woflag is None else ((" " + woflag) if woflag else "")
    WDF = WF if wdflag is None else ((" " + wdflag) if wdflag else "")
    RING = 256 - depth*4
    def ring(s): return f"v[{RING+4*s}:{RING+4*s+3}]"
    def ringr(s, r): return f"v{RING+4*s+r}"
    W0 = 96
    def wreg(t): return f"v[{W0+4*t}:{W0+4*t+3}]"
    def stamp(k):
        if stamps: a(f"s_memrealtime s[{72+2*k}:{73+2*k}]")
    def xstamp(k):
        if stamps: a(f"s_memrealtime s[{88+2*k}:{89+2*k}]")
    SR = [63]
    def ts(idx):
        if stamps: a(f"s_memrealtime s[96:97]\n s_waitcnt lgkmcnt(0)\n v_writelane_b32 v{SR[0]}, s96, {idx}")
    def ts_dyn(base):
        if stamps and not x_nots: a(f"s_memrealtime s[96:97]\n s_add_u32 s94, s49, {base}\n s_waitcnt lgkmcnt(0)\n s_mov_b32 m0, s94\n v_writelane_b32 v{SR[0]}, s96, m0")
    def lgkm(n): a(f"s_waitcnt lgkmcnt({0 if stamps else n})")
    def allreduce(op, v):
        for rr in (8, 4, 2, 1): a(f"{op}_dpp v{v}, v{v}, v{v} row_ror:{rr} {FULL}")
        a(f"v_readlane_b32 s54, v{v}, 0\n v_readlane_b32 s55, v{v}, 16\n v_readlane_b32 s56, v{v}, 32\n v_readlane_b32 s58, v{v}, 48")
        a(f"v_mov_b32 v{v}, s54\n {op} v{v}, s55, v{v}\n {op} v{v}, s56, v{v}\n {op} v{v}, s58, v{v}")
    def rbf(v):
        a(f"v_cvt_pk_bf16_f32 v{v}, v{v}, v{v}\n v_lshlrev_b32 v{v}, 16, v{v}")
    def srd(base, lo, hi, size):
        a(f"s_mov_b32 s{base}, s{lo}\n s_mov_b32 s{base+1}, s{hi}\n s_mov_b32 s{base+2}, {size}\n s_mov_b32 s{base+3}, 0x20000")
    def mfma(d, A, B, C=None):
        a(f"v_mfma_f32_16x16x32_bf16 v[{d}:{d+3}], v[{A}:{A+3}], {B}, " + (C if C is not None else f"v[{d}:{d+3}]"))
    def perms(A, X, sel):
        for r in range(4): a(f"v_perm_b32 v{A+r}, v{X}, v{X}, v{sel+r}")
    a(f"""
    s_cmp_ge_u32 s2, 256
    s_cbranch_scc1 L_end
    s_load_dwordx16 s[4:19], s[0:1], 0
    s_load_dwordx8 s[20:27], s[0:1], 64
    s_load_dwordx2 s[28:29], s[0:1], 96
    """)
    stamp(0)
    if stamps: a("v_mov_b32 v63, 0")
    if swaproles: a("v_xor_b32 v0, 0x100, v0")
    a(f"""
    v_lshrrev_b32 v2, 6, v0
    v_and_b32 v1, 63, v0
    s_and_b32 s54, s2, 7             ; x
    v_readfirstlane_b32 s3, v2       ; wave
    s_lshr_b32 s55, s2, 3            ; j
    s_and_b32 s30, s55, 3
    """)
    if hmap == 0: a("s_lshl_b32 s56, s54, 2\n s_add_u32 s30, s30, s56          ; h = 4x + (j&3)")
    else: a("s_lshl_b32 s30, s30, 3\n s_add_u32 s30, s30, s54          ; h = x + 8 (j&3)")
    a(f"""
    s_bfe_u32 s31, s55, 0x10002      ; b = (j>>2)&1
    s_lshr_b32 s32, s55, 3           ; split
    s_lshl_b32 s33, s31, 5
    s_add_u32 s33, s33, s30          ; bh
    s_lshl_b32 s34, s33, 2
    s_add_u32 s34, s34, s32
    v_and_b32 v3, 15, v1             ; c
    v_lshrrev_b32 v2, 4, v1          ; g
    s_cmp_ge_u32 s3, 4
    s_cbranch_scc1 L_stream
    """)
    def selectors():
        a(f"""
        v_and_b32 v70, 1, v3
        v_mov_b32 v71, 0x0c0c0100
        v_mov_b32 v72, 0x01000c0c
        v_mov_b32 v73, 0x0c0c0302
        v_mov_b32 v74, 0x03020c0c
        v_cmp_eq_u32 vcc, 1, v70
        v_cndmask_b32 v71, v71, v72, vcc
        v_cndmask_b32 v73, v73, v74, vcc
        v_mov_b32 v75, 0x0c0c0c0c
        v_bfe_u32 v70, v3, 1, 2
        """)
        for r in range(4):
            a(f"v_cmp_eq_u32 vcc, {r}, v70\n v_cndmask_b32 v{8+r}, v75, v71, vcc\n v_cndmask_b32 v{12+r}, v75, v73, vcc")
    def tile20(extra=0):
        for t in range(20):
            A = 16 + 4*(t & 1)
            perms(A, 44 + (t >> 1), 8 + 4*(t & 1))
            a(f"s_waitcnt vmcnt({19-t+extra})")
            mfma(24, A, wreg(t), "0" if t == 0 else None)
    def tau_fg():
        a(f"""
        s_and_b32 s54, s2, 7                 ; x
        s_lshr_b32 s55, s2, 3                ; j
        s_lshr_b32 s56, s54, 1               ; x>>1
        s_mul_i32 s57, s56, 24
        s_add_u32 s57, s57, 128
        s_add_u32 s57, s57, s55
        s_cmp_ge_u32 s55, 24
        s_cselect_b32 s57, 999, s57          ; odd x
        s_lshl_b32 s35, s56, 5
        s_add_u32 s35, s35, s55              ; even x
        s_bitcmp1_b32 s54, 0
        s_cselect_b32 s35, s57, s35          ; tau: gate / up tile (>= 224: none)
        s_lshl_b32 s57, s32, 2
        s_and_b32 s59, s55, 3
        s_add_u32 s57, s57, s59              ; jb
        s_mul_i32 s59, s56, 11
        s_add_u32 s59, s59, s57
        s_add_u32 s59, s59, 59               ; 64 + 11*(x>>1) + jb - 5
        s_cmp_lt_u32 s57, 5
        s_cselect_b32 s59, 999, s59
        s_lshl_b32 s61, s56, 4
        s_add_u32 s61, s61, s57
        s_bitcmp1_b32 s54, 0
        s_cselect_b32 s61, s59, s61          ; fg: w_down row group (>= 108: none)
        """)
        if x_noffn: a("s_movk_i32 s35, 999\n s_movk_i32 s61, 999")
        a(f"""
        """)
    def gates():
        srd(36, 22, 23, 1280)
        a(f"""
    v_lshlrev_b32 v72, 5, v1
    v_mov_b32 v73, {OOB:#x}
    v_cmp_gt_u32 vcc, 40, v1
    v_cndmask_b32 v72, v73, v72, vcc
    buffer_load_dwordx4 v[44:47], v72, s[44:47], 0 offen
    buffer_load_dwordx4 v[48:51], v72, s[44:47], 0 offen offset:16
    buffer_load_dwordx4 v[52:55], v72, s[44:47], 0 offen offset:1280
    buffer_load_dwordx4 v[56:59], v72, s[44:47], 0 offen offset:1296
    buffer_load_dwordx4 v[64:67], v72, s[36:39], 0 offen
    buffer_load_dwordx4 v[68:71], v72, s[36:39], 0 offen offset:16
    """)
        a(f"""
    s_waitcnt vmcnt(0)
    v_mov_b32 v74, 0
    v_mov_b32 v75, 0
    """)
        if mimic:
            for bb in range(2):
                for k in range(8):
                    x = 44 + 8*bb + k; g_ = 64 + k
                    a(f"""
                v_lshlrev_b32 v76, 16, v{x}
                v_lshlrev_b32 v77, 16, v{g_}
                v_and_b32 v78, 0xffff0000, v{x}
                v_and_b32 v79, 0xffff0000, v{g_}
                v_mul_f32 v76, v76, v77
                v_mul_f32 v78, v78, v79
                v_cvt_pk_bf16_f32 v76, v76, v78
                v_lshlrev_b32 v77, 16, v76
                v_and_b32 v76, 0xffff0000, v76
                v_add_f32 v{74+bb}, v{74+bb}, v77
                v_add_f32 v{74+bb}, v{74+bb}, v76
                """)
        else:
            for k in range(8):
                a(f"v_dot2c_f32_bf16 v74, v{44+k}, v{64+k}\n v_dot2c_f32_bf16 v75, v{52+k}, v{64+k}")
        allreduce("v_add_f32", 74)
        allreduce("v_add_f32", 75)
        for bb in range(2):
            z = 74 + bb
            if mimic: rbf(z)
            a(f"""
        v_mul_f32 v{z}, {f2u(-LOG2E):#x}, v{z}
        v_exp_f32 v{z}, v{z}
        v_add_f32 v{z}, 1.0, v{z}
        v_rcp_f32 v{z}, v{z}
        """)
            if mimic: rbf(z)
            a(f"v_sub_f32 v{76+bb}, 1.0, v{z}")
            if mimic: rbf(76+bb)
        a(f"""
        v_mov_b32 v72, 0
        ds_write_b128 v72, v[74:77] offset:{L_G}
        ds_write_b32 v72, v72 offset:{L_G+16}
        s_waitcnt lgkmcnt(0)
        """)
    def slot_offset():
        a(f"""
        v_lshrrev_b32 v7, 1, v2
        v_lshlrev_b32 v7, 9, v7              ; bb*512
        v_and_b32 v5, 1, v2
        v_lshl_add_u32 v7, v5, 4, v7
        v_lshl_add_u32 v7, v3, 5, v7
        """)
    a(f"""
    s_lshl_b32 s57, s31, 2
    s_add_u32 s57, s57, s32
    s_lshl_b32 s60, s30, 3
    s_add_u32 s60, s60, s57
    s_cmp_eq_u32 s3, {99 if x_noq else 0}
    s_cbranch_scc0 L_a_notw0
    s_mul_i32 s57, s57, 80
    v_mad_u32_u24 v4, v2, 20, s57
    v_lshrrev_b32 v6, 3, v3
    v_mul_u32_u24 v6, 1280, v6           ; bb*1280
    v_lshl_add_u32 v5, v4, 1, v6         ; x offset
    s_lshl_b32 s57, s30, 8
    v_lshlrev_b32 v4, 13, v4
    v_lshl_add_u32 v7, v3, 4, s57
    v_add_u32 v4, v4, v7
    s_mov_b32 s48, 0
    s_movk_i32 s49, 0x2000
    """)
    a("v_mov_b32 v55, v5")
    slot_offset()
    a(f"""
    v_mov_b32 v5, v55
    s_lshl_b32 s58, s60, 10
    s_add_u32 s58, s58, {WS_Q}
    s_lshl_b32 s56, s30, 13
    s_lshl_b32 s57, s31, 9
    s_add_u32 s56, s56, s57
    s_add_u32 s56, s56, {WS_Q}
    s_add_u32 s57, s56, 4096
    v_lshlrev_b32 v6, 3, v1
    s_waitcnt lgkmcnt(0)
    """)
    srd(40, 28, 29, hex(WS_SIZE))
    if x_late:
        a(f"s_cmp_eq_u32 s32, 3\n s_cbranch_scc0 L_x_nolate")
        for _ in range(x_late): a("s_sleep 127")
        a("L_x_nolate:")
    a(f"""
    buffer_load_dwordx4 v[28:31], v7, s[40:43], s58 offen sc1
    """)
    for rb in range(8):
        a(f"buffer_load_dwordx2 v[{80+2*rb}:{81+2*rb}], v6, s[40:43], {'s56' if rb < 4 else 's57'} offen offset:{(rb & 3)*1024} sc1")
    srd(44, 4, 5, 2560)
    srd(36, 10, 11, 5242880)
    for k in range(5): a(f"buffer_load_dwordx2 v[{44+2*k}:{45+2*k}], v5, s[44:47], 0 offen offset:{8*k}")
    for t in range(20):
        a(f"buffer_load_dwordx4 {wreg(t)}, v4, s[36:39], s48 offen{WF}")
        if t < 19: a("s_add_u32 s48, s48, s49")
    if a0: a("s_barrier")
    selectors()
    srd(64, 26, 27, 256)
    a(f"""
    s_mul_i32 s59, s30, {cstride}
    v_mov_b32 v54, s59
    s_mov_b32 s69, 0x10001
    s_waitcnt vmcnt(20)
    """)
    tile20()
    xstamp(0)
    a("v_lshlrev_b32 v5, 2, v1")
    for k in range(4): a(f"v_not_b32 v{28+k}, v{28+k}")
    for k in range(4): a(f"v_bfi_b32 v{24+k}, 1, v{28+k}, v{24+k}")
    a(f"""
    buffer_store_dwordx4 v[24:27], v7, s[40:43], s58 offen sc1
    s_mov_b32 s49, 0
L_a_qp:
    """)
    for rb in range(8):
        a(f"buffer_load_dwordx2 v[{64+2*rb}:{65+2*rb}], v6, s[40:43], {'s56' if rb < 4 else 's57'} offen offset:{(rb & 3)*1024} sc1")
    a("s_add_u32 s49, s49, 1\n s_waitcnt vmcnt(0)")
    for k in range(16): a(f"v_xor_b32 v{28 if k == 0 else 29}, v{64+k}, v{80+k}" + ("" if k == 0 else "\n v_and_b32 v28, v28, v29"))
    a(f"""
    v_and_b32 v28, {0 if x_forceslow else 1}, v28
    v_cmp_eq_u32 vcc, 0, v28
    s_cmp_ge_u32 s49, {spin_max}
    s_cbranch_scc1 L_a_q_got
    s_cbranch_vccz L_a_q_got
    {"s_sleep %d" % qsleep if qsleep else ""}
    s_cmp_lt_u32 s49, 6
    s_cbranch_scc1 L_a_qp
    s_cmp_eq_u32 s49, 6
    s_cbranch_scc0 L_a_q_noset
    v_mov_b32 v28, {OOB:#x}
    v_cmp_eq_u32 vcc, 0, v1
    v_cndmask_b32 v28, v28, v54, vcc
    v_mov_b32 v29, 1
    buffer_atomic_add v29, v28, s[64:67], 0 offen sc1
    s_mov_b32 s69, 0x10000
L_a_q_noset:
    buffer_load_dword v28, v54, s[64:67], 0 offen sc1
    s_waitcnt vmcnt(0)
    v_and_b32 v28, 0xffff, v28
    s_nop 0
    v_readfirstlane_b32 s55, v28
    s_cmp_ge_u32 s55, 8
    s_cbranch_scc1 L_a_q_flagged
    s_sleep 8
    s_branch L_a_qp
L_a_q_flagged:
    """)
    for rb in range(8):
        a(f"buffer_load_dwordx2 v[{64+2*rb}:{65+2*rb}], v6, s[40:43], {'s56' if rb < 4 else 's57'} offen offset:{(rb & 3)*1024} sc1")
    a("s_waitcnt vmcnt(0)\nL_a_q_got:")
    xstamp(1)
    if stamps: a("s_mov_b32 s92, s49")
    for k in range(16): a(f"v_and_b32 v{64+k}, -2, v{64+k}")
    for k in range(2):
        a(f"""
        v_add_f32 v{64+k}, v{64+k}, v{66+k}
        v_add_f32 v{68+k}, v{68+k}, v{70+k}
        v_add_f32 v{72+k}, v{72+k}, v{74+k}
        v_add_f32 v{76+k}, v{76+k}, v{78+k}
        v_add_f32 v{64+k}, v{64+k}, v{68+k}
        v_add_f32 v{72+k}, v{72+k}, v{76+k}
        v_add_f32 v{64+k}, v{64+k}, v{72+k}
        """)
    a(f"""
    v_cvt_pk_bf16_f32 v64, v64, v65
    ds_write_b32 v5, v64 offset:{L_QB}
    s_waitcnt lgkmcnt(0)
    s_branch L_a_barA
L_a_notw0:
    """)
    if a0: a("s_barrier")
    a(f"""
    s_waitcnt lgkmcnt(0)
    """)
    srd(44, 4, 5, 2560)
    srd(40, 28, 29, hex(WS_SIZE))
    srd(64, 26, 27, 256)
    tau_fg()
    a(f"""
    s_cmp_eq_u32 s3, 2
    s_cbranch_scc0 L_a_noclear
    v_mov_b32 v64, {SENT:#x}
    v_mov_b32 v65, v64
    v_mov_b32 v66, v64
    v_mov_b32 v67, v64
    v_lshlrev_b32 v68, 4, v1
    s_mul_i32 s56, s34, 2560
    v_mov_b32 v70, {OOB:#x}
    v_cmp_gt_u32 vcc, 32, v1
    v_cndmask_b32 v69, v70, v68, vcc
    buffer_store_dwordx4 v[64:67], v68, s[40:43], s56 offen sc1
    buffer_store_dwordx4 v[64:67], v68, s[40:43], s56 offen offset:1024 sc1
    buffer_store_dwordx4 v[64:67], v69, s[40:43], s56 offen offset:2048 sc1
    """)
    if opt_h: a(f"""
    s_lshl_b32 s56, s34, 11
    s_add_u32 s56, s56, {WS_O}
    buffer_store_dwordx4 v[64:67], v68, s[40:43], s56 offen sc1
    buffer_store_dwordx4 v[64:67], v68, s[40:43], s56 offen offset:1024 sc1
    """)
    a(f"""
    s_lshl_b32 s56, s34, 9
    s_add_u32 s56, s56, {WS_ML}
    v_cmp_gt_u32 vcc, 32, v1
    v_cndmask_b32 v69, v70, v68, vcc
    buffer_store_dwordx4 v[64:67], v69, s[40:43], s56 offen sc1
    s_cmp_lt_u32 s35, 224
    s_cbranch_scc0 L_a_noclear_f
    s_lshl_b32 s56, s35, 10
    s_add_u32 s56, s56, {WS_F1}
    buffer_store_dwordx4 v[64:67], v68, s[40:43], s56 offen sc1
L_a_noclear_f:
    """)
    if pretouch: a(f"""
    s_lshl_b32 s56, s33, 21
    s_lshl_b32 s57, s32, 19
    s_add_u32 s56, s56, s57
    s_add_u32 s68, s8, s56
    s_addc_u32 s69, s9, 0
    s_mov_b32 s70, 0x80000
    s_mov_b32 s71, 0x20000
    v_mov_b32 v71, 0
    v_mov_b32 v72, 0x7fffc
    buffer_load_dword v73, v71, s[68:71], 0 offen nt
    buffer_load_dword v74, v72, s[68:71], 0 offen nt
    s_mov_b32 s68, s12
    s_mov_b32 s69, s13
    s_mov_b32 s70, 5242880
    s_mul_i32 s56, s30, {128*1280}
    buffer_load_dword v75, v71, s[68:71], s56 offen nt
    s_mov_b32 s68, s20
    s_mov_b32 s69, s21
    s_mov_b32 s70, {1728*1280}
    s_mul_i32 s56, s61, {16*1280}
    buffer_load_dword v76, v71, s[68:71], s56 offen nt
    """)
    a(f"""
    s_waitcnt vmcnt(0)
L_a_noclear:
    s_cmp_eq_u32 s3, 3
    s_cbranch_scc0 L_a_nogate
    """)
    gates()
    a("L_a_nogate:")
    selectors()
    a(f"""
L_a_barA:
    s_barrier
    """)
    stamp(1)
    a(f"""
    s_cmp_eq_u32 s3, 0
    s_cbranch_scc0 L_a_notw0b
    v_mov_b32 v68, {OOB:#x}
    v_cmp_eq_u32 vcc, 0, v1
    v_cndmask_b32 v68, v68, v54, vcc
    v_mov_b32 v69, s69
    {"s_nop 0" if x_noflag else "buffer_atomic_add v69, v68, s[64:67], 0 offen sc1"}
    """)
    tau_fg()
    a(f"""
L_a_notw0b:
    s_cmp_eq_u32 s3, 1
    s_cbranch_scc0 L_a_notw1
    s_cmp_lt_u32 s35, 224
    s_cbranch_scc0 L_a_notw1
    s_and_b32 s57, s35, 7
    s_mul_i32 s57, s57, 80
    v_mad_u32_u24 v64, v2, 20, s57
    v_lshrrev_b32 v6, 3, v3
    v_mul_u32_u24 v6, 1280, v6
    v_lshl_add_u32 v65, v64, 1, v6       ; x offset
    v_mul_u32_u24 v64, 3456, v64
    s_lshr_b32 s57, s35, 3               ; m*14 + cb
    s_cmp_ge_u32 s57, 14
    s_cselect_b32 s36, s18, s16
    s_cselect_b32 s37, s19, s17
    s_cselect_b32 s56, 14, 0
    s_sub_u32 s57, s57, s56
    s_lshl_b32 s57, s57, 8               ; cb*256
    s_mov_b32 s38, 2211840
    s_mov_b32 s39, 0x20000
    v_lshl_add_u32 v66, v3, 4, s57
    v_add_u32 v64, v64, v66
    s_mov_b32 s48, 0
    s_movk_i32 s49, 3456
    """)
    for k in range(5): a(f"buffer_load_dwordx2 v[{44+2*k}:{45+2*k}], v65, s[44:47], 0 offen offset:{8*k}")
    for t in range(20):
        a(f"buffer_load_dwordx4 {wreg(t)}, v64, s[36:39], s48 offen{WF}")
        if t < 19: a("s_add_u32 s48, s48, s49")
    slot_offset()
    a(f"""
    s_lshl_b32 s57, s35, 10
    s_add_u32 s57, s57, {WS_F1}
    s_waitcnt vmcnt(20)
    """)
    tile20()
    for k in range(4): a(f"v_min_u32 v{24+k}, 0xfffffffe, v{24+k}")
    a(f"""
    buffer_store_dwordx4 v[24:27], v7, s[40:43], s57 offen sc1
L_a_notw1:
    """)
    ts(1)
    a(f"""
    v_mov_b32 v72, 0
    ds_read_b128 v[64:67], v72 offset:{L_G}
    s_waitcnt lgkmcnt(0)
    v_readfirstlane_b32 s62, v64
    v_readfirstlane_b32 s63, v65
    v_readfirstlane_b32 s50, v66
    v_readfirstlane_b32 s51, v67
    """)
    if opt_h:
        srd(36, 12, 13, 5242880)
        a(f"""
    s_lshl_b32 s56, s30, 7
    s_lshl_b32 s57, s32, 5
    s_add_u32 s56, s56, s57
    s_lshl_b32 s57, s3, 3
    s_add_u32 s56, s56, s57
    v_lshl_add_u32 v4, v2, 1, s56        ; row
    v_mul_u32_u24 v4, 1280, v4
    v_lshl_add_u32 v4, v3, 4, v4
    s_movk_i32 s48, 1280
    """)
        for rg in range(2):
            for cb in range(5):
                a(f"buffer_load_dwordx4 {wreg(rg*5+cb)}, v4, s[36:39], {'0' if rg == 0 else 's48'} offen offset:{cb*256}{WOF}")
    else:
        srd(36, 12, 13, 5242880)
        a(f"""
    s_lshl_b32 s56, s30, 7
    s_lshl_b32 s57, s3, 5
    s_add_u32 s56, s56, s57
    v_lshl_add_u32 v4, v2, 3, s56        ; row = h*128 + 32v + 8g
    v_mul_u32_u24 v4, 1280, v4
    v_lshl_add_u32 v4, v3, 4, v4
    """)
        for rg in range(8):
            a(f"s_movk_i32 s48, {rg*1280}")
            for cb in range(5):
                if rg*5+cb >= wo_n: continue
                a(f"buffer_load_dwordx4 {wreg(rg*5+cb)}, v4, s[36:39], s48 offen offset:{cb*256}{WOF}")
                if wo_pace and (rg*5+cb) >= wo_pace-1: a(f"s_waitcnt vmcnt({wo_pace-1})")
    stamp(2)
    srd(36, 20, 21, 1728*1280)
    a(f"""
    s_cmp_lt_u32 s61, 108
    s_cbranch_scc0 L_a_nowd
    s_lshl_b32 s56, s61, 4
    s_lshl_b32 s57, s3, 2
    s_add_u32 s56, s56, s57
    v_add_u32 v4, s56, v2
    v_mul_u32_u24 v4, 1280, v4
    v_lshl_add_u32 v4, v3, 4, v4
    """)
    for cb in range(5): a(f"buffer_load_dwordx4 v[{64+4*cb}:{67+4*cb}], v4, s[36:39], 0 offen offset:{cb*256}{WDF}")
    a("L_a_nowd:")
    ts(2)
    if x_noflag or x_nocheck & 1: a("s_branch L_a_all_done")
    if ldsconf: a(f"""
    s_cmp_eq_u32 s3, 0
    s_cbranch_scc1 L_a_all0
    v_mov_b32 v87, 0
    s_mov_b32 s49, 0
L_a_conf:
    ds_read_b32 v88, v87 offset:{L_G+16}
    s_add_u32 s49, s49, 1
    s_waitcnt lgkmcnt(0)
    v_readfirstlane_b32 s56, v88
    s_cmp_ge_u32 s49, {spin_max*16}
    s_cbranch_scc1 L_a_all_done
    s_cmp_lg_u32 s56, 0
    s_cbranch_scc1 L_a_all_done
    s_sleep 4
    s_branch L_a_conf
L_a_all0:
    """)
    a(f"""
    v_and_b32 v87, 31, v1
    v_mul_u32_u24 v87, {cstride}, v87
    v_mov_b32 v86, 0x80000
    s_mov_b32 s49, 0
L_a_all:
    buffer_load_dword v88, v87, s[64:67], 0 offen sc1
    s_add_u32 s49, s49, 1
    s_waitcnt vmcnt(0)
    v_cmp_gt_u32 vcc, v86, v88
    s_cmp_ge_u32 s49, {spin_max}
    s_cbranch_scc1 L_a_all_ok
    s_cbranch_vccz L_a_all_ok
    s_sleep 64
    s_branch L_a_all
L_a_all_ok:
    """)
    if ldsconf: a(f"""
    v_mov_b32 v87, 0
    v_mov_b32 v88, 1
    ds_write_b32 v87, v88 offset:{L_G+16}
    """)
    a(f"""
L_a_all_done:
    """)
    if stamps: a("s_mov_b32 s95, s49")
    ts(3)
    if stamps: a("v_writelane_b32 v63, s95, 10")
    for k in range(20): a(f"v_mov_b32 v{24+k}, 0")
    a(f"""
    s_cmp_lt_u32 s61, 108
    s_cbranch_scc0 L_a_noffn2
    s_lshr_b32 s56, s61, 3               ; cb = f >> 7
    s_lshl_b32 s56, s56, 13
    s_lshl_b32 s57, s31, 9
    s_add_u32 s56, s56, s57
    s_and_b32 s57, s61, 7
    s_lshl_b32 s57, s57, 6
    s_add_u32 s56, s56, s57
    s_lshl_b32 s57, s3, 4
    s_add_u32 s56, s56, s57
    s_add_u32 s56, s56, {WS_F1}          ; + (16 (fg&7) + 4v)*4
    v_and_b32 v86, 7, v3
    v_lshlrev_b32 v86, 10, v86           ; rb*1024
    v_lshrrev_b32 v87, 3, v3
    v_mul_u32_u24 v87, {14*8*1024}, v87  ; matrix
    v_add_u32 v86, v86, v87
    v_lshl_add_u32 v86, v2, 2, v86       ; + g*4
    v_mov_b32 v44, 0
    s_mov_b32 s49, 0
L_a_f1:
    buffer_load_dword v88, v86, s[40:43], s56 offen sc1
    s_add_u32 s49, s49, 1
    s_waitcnt vmcnt(0)
    v_cmp_eq_u32 vcc, -1, v88
    s_cmp_ge_u32 s49, {spin_max}
    s_cbranch_scc1 L_a_f1_done
    s_cbranch_vccz L_a_f1_done
    s_sleep 16
    s_branch L_a_f1
L_a_f1_done:
    """)
    if stamps: a("s_mov_b32 s95, s49")
    ts(4)
    if stamps: a("v_writelane_b32 v63, s95, 11")
    a(f"""
    v_add_f32_dpp v88, v88, v88 quad_perm:[1,0,3,2] {FULL}
    v_add_f32_dpp v88, v88, v88 quad_perm:[2,3,0,1] {FULL}
    v_add_f32_dpp v88, v88, v88 row_half_mirror {FULL}
    v_mov_b32_dpp v89, v88 row_ror:8 {FULL}
    """)
    if mimic: rbf(88); rbf(89)
    a(f"""
    v_mul_f32 v90, {f2u(-LOG2E):#x}, v88
    v_exp_f32 v90, v90
    v_add_f32 v90, 1.0, v90
    v_rcp_f32 v90, v90
    v_mul_f32 v90, v90, v88
    """)
    if mimic: rbf(90)
    a(f"""
    v_mul_f32 v90, v90, v89
    s_mov_b32 exec_lo, 0x00ff00ff
    s_mov_b32 exec_hi, 0x00ff00ff
    v_cvt_pk_bf16_f32 v44, v90, v90
    s_mov_b64 exec, -1
    """)
    perms(16, 44, 8)
    for cb in range(5): mfma(24+4*cb, 16, f"v[{64+4*cb}:{67+4*cb}]")
    a("s_cmp_eq_u32 s31, 0\n s_cselect_b32 s56, s50, s51")
    for k in range(20): a(f"v_mul_f32 v{24+k}, s56, v{24+k}")
    a("L_a_noffn2:")
    ts(5)
    if opt_h:
        a(f"""
    s_cmp_eq_u32 s31, 0
    s_cselect_b32 s68, s62, s63
    s_lshl_b32 s54, s33, 13
    s_add_u32 s54, s54, {WS_O}
    s_lshl_b32 s55, s32, 7
    s_add_u32 s54, s54, s55
    s_lshl_b32 s55, s3, 5
    s_add_u32 s54, s54, s55              ; + (32 split + 8 v)*4
    v_lshlrev_b32 v6, 9, v3
    v_lshl_add_u32 v6, v2, 3, v6         ; + 2g*4
    v_add_u32 v6, s54, v6
    v_mov_b32 v44, 0
    s_mul_i32 s54, s3, 2560
    v_lshlrev_b32 v7, 5, v3
    v_lshl_add_u32 v7, v2, 4, v7
    v_add_u32 v7, s54, v7
    s_waitcnt vmcnt(0)
    """)
    else:
        a(f"""
    s_cmp_eq_u32 s31, 0
    s_cselect_b32 s68, s62, s63
    s_lshl_b32 s54, s3, 7
    v_lshl_add_u32 v6, v2, 5, s54
    v_mov_b32 v44, 0x0c0c0c0c
    v_cmp_gt_u32 vcc, 8, v3
    v_cndmask_b32 v48, v44, v8, vcc
    v_cndmask_b32 v49, v44, v9, vcc
    v_cndmask_b32 v50, v44, v10, vcc
    v_cndmask_b32 v51, v44, v11, vcc
    v_cndmask_b32 v52, v44, v12, vcc
    v_cndmask_b32 v53, v44, v13, vcc
    v_cndmask_b32 v54, v44, v14, vcc
    v_cndmask_b32 v55, v44, v15, vcc
    s_mul_i32 s54, s3, 2560
    v_lshlrev_b32 v7, 5, v3
    v_lshl_add_u32 v7, v2, 4, v7
    v_add_u32 v7, s54, v7
    s_waitcnt vmcnt(0)
    """)
    stamp(3)
    a("s_barrier")
    stamp(4)
    if opt_h:
        a(f"""
    s_mov_b32 s49, 0
L_a_o:
    buffer_load_dwordx2 v[64:65], v6, s[40:43], 0 offen sc1
    s_add_u32 s49, s49, 1
    s_waitcnt vmcnt(0)
    v_max_u32 v66, v64, v65
    v_cmp_eq_u32 vcc, -1, v66
    s_cmp_ge_u32 s49, {spin_max}
    s_cbranch_scc1 L_a_o_done
    s_cbranch_vccnz L_a_o
L_a_o_done:
    """)
        for rr in (8, 4, 2, 1):
            a(f"v_add_f32_dpp v64, v64, v64 row_ror:{rr} {FULL}\n v_add_f32_dpp v65, v65, v65 row_ror:{rr} {FULL}")
        a(f"""
    s_mov_b32 exec_lo, 0x00ff00ff
    s_mov_b32 exec_hi, 0x00ff00ff
    v_cvt_pk_bf16_f32 v44, v64, v65
    s_mov_b64 exec, -1
    """)
        perms(16, 44, 8)
        perms(20, 44, 12)
        for cb in range(5): mfma(24+4*cb, 16, wreg(cb))
        for cb in range(5): mfma(24+4*cb, 20, wreg(5+cb))
    else:
        for hh in range(2):
            for w in range(4):
                a(f"ds_read_b128 v[{64+8*w+4*hh}:{67+8*w+4*hh}], v6 offset:{L_OP+512*w+16*hh}")
        def osum(k0):
            for k in range(k0, k0+4): a(f"v_add_f32 v{64+k}, v{64+k}, v{72+k}\n v_add_f32 v{80+k}, v{80+k}, v{88+k}")
            for k in range(k0, k0+4): a(f"v_add_f32 v{64+k}, v{64+k}, v{80+k}")
            for r in range(k0//2, k0//2+2): a(f"v_cvt_pk_bf16_f32 v{44+r}, v{64+2*r}, v{65+2*r}")
        def pm(rg, r):
            A = 16 + 4*(rg & 1)
            a(f"v_perm_b32 v{A+r}, v{44+(rg >> 1)}, v{44+(rg >> 1)}, v{48+4*(rg & 1)+r}")
        lgkm(4)
        osum(0)
        for r in range(4): pm(0, r)
        extra = []
        for rg in range(8):
            A = 16 + 4*(rg & 1)
            for cb in range(5):
                mfma(24+4*cb, A, wreg(rg*5+cb))
                if rg == 1 and cb == 0:
                    lgkm(0); osum(4)
                if rg < 7 and cb < 4: pm(rg+1, cb)
    a("s_mov_b32 exec_hi, 0")
    for cb in range(5): a(f"ds_write_b128 v7, v[{24+4*cb}:{27+4*cb}] offset:{L_YP+cb*512}")
    a(f"""
    s_mov_b32 exec_hi, -1
    s_waitcnt lgkmcnt(0)
    s_barrier
    s_branch L_pub
    """)
    a(f"""
L_stream:
    """)
    if prio: a(f"s_setprio {prio}")
    if stamps: a("s_memtime s[88:89]")
    a(f"""
    s_sub_u32 s57, s3, 4
    s_lshl_b32 s56, s33, 21
    s_lshl_b32 s58, s32, 19
    s_add_u32 s56, s56, s58
    v_lshlrev_b32 v4, 4, v1          ; lane*16
    s_lshr_b32 s58, s2, 3
    s_mul_i32 s58, s58, {ra}
    s_and_b32 s59, s2, 7
    s_mul_i32 s59, s59, {rx}
    s_add_u32 s58, s58, s59
    s_lshl_b32 s58, s58, {ru}
    s_lshl_b32 s59, s57, 12
    s_add_u32 s48, s58, s59
    s_and_b32 s48, s48, 0x7ffff
    v_mov_b32 v14, {OOB:#x}
    s_lshl_b32 s59, s34, 2
    s_add_u32 s59, s59, s57
    s_lshl_b32 s59, s59, 7
    s_add_u32 s59, s59, {WS_ML}
    v_lshl_add_u32 v47, v1, 3, s59
    v_cmp_gt_u32 vcc, 16, v1
    v_cndmask_b32 v47, v14, v47, vcc
    s_waitcnt lgkmcnt(0)
    s_add_u32 s36, s6, s56
    s_addc_u32 s37, s7, 0
    s_mov_b32 s38, 0x80000
    s_mov_b32 s39, 0x20000
    s_add_u32 s44, s8, s56
    s_addc_u32 s45, s9, 0
    """)
    srd(40, 28, 29, hex(WS_SIZE))
    srd(64, 26, 27, 256)
    if a0: a("s_barrier")
    VF = SF if vflag is None else ((" " + vflag) if vflag else "")
    def sload(s, fl=None):
        a(f"buffer_load_dwordx4 {ring(s)}, v4, s[36:39], s48 offen offset:{(s&3)*1024}{SF if fl is None else fl}")
        if (s & 3) == 3: a("s_add_u32 s48, s48, 0x4000\n s_and_b32 s48, s48, 0x7ffff")
    for s in range(depth):
        if thr and s >= thr: a(f"s_waitcnt vmcnt({thr-1})")
        sload(s)
    a(f"""
    v_and_b32 v32, 1, v3
    v_mov_b32 v33, 0xffff
    v_mov_b32 v34, 0xffff0000
    v_cmp_eq_u32 vcc, 1, v32
    v_cndmask_b32 v33, v33, v34, vcc
    v_lshrrev_b32 v32, 1, v3              ; c>>1
    """)
    for r in range(4):
        a(f"v_cmp_eq_u32 vcc, {r}, v32\n v_cndmask_b32 v{16+r}, 0, v33, vcc")
    Q = 80
    a(f"""
    s_mov_b32 s50, 0xaaaaaaaa
    s_mov_b32 s51, 0xaaaaaaaa
    s_mov_b32 s52, 0xcccccccc
    s_mov_b32 s53, 0xcccccccc
    v_lshlrev_b32 v46, 4, v3
    s_barrier
    """)
    stamp(1)
    a(f"""
    ds_read_b128 v[{Q}:{Q+3}], v46 offset:{L_QB}
    s_lshl_b32 s59, s31, 2
    v_mov_b32 v56, s59
    ds_read_b32 v56, v56 offset:{L_G}
    s_mov_b32 s49, 0
    s_waitcnt lgkmcnt(0)
L_kloop:
    """)
    Pa, Pb, Qe, Qo, T0, T1, t1, t2 = 32, 33, 36, 37, 40, 41, 42, 43
    R = [38, 39, 34, 35]
    U = [44, 45]
    ngroups = depth//16
    assert depth in (16, 32)
    for grp in range(ngroups):
        for k in range(8):
            for half, P in ((0, Pa), (1, Pb)):
                s = grp*16 + 2*k + half
                if not thr: a(f"s_waitcnt vmcnt({depth-1})")
                a(f"v_mov_b32 v{P}, 0")
                if x_nok: a(f"v_add_u32 v{P}, {ringr(s, 0)}, v{Q}")
                else:
                    for r in range(4): a(f"v_dot2c_f32_bf16 v{P}, {ringr(s, r)}, v{Q+r}")
                if thr: a(f"s_waitcnt vmcnt({thr-1})")
                sload(s)
            if x_nok == 2: continue
            Qx = Qe if k % 2 == 0 else Qo
            a(f"v_add_f32_dpp v{Qx}, v{Pa}, v{Pa} row_ror:8 row_mask:0xf bank_mask:0x3")
            a(f"v_add_f32_dpp v{Qx}, v{Pb}, v{Pb} row_ror:8 row_mask:0xf bank_mask:0xc")
            if k % 2 == 1:
                Rx = R[k >> 1]
                a(f"v_add_f32_dpp v{Rx}, v{Qe}, v{Qe} row_shl:4 row_mask:0xf bank_mask:0x5")
                a(f"v_add_f32_dpp v{Rx}, v{Qo}, v{Qo} row_shr:4 row_mask:0xf bank_mask:0xa")
            if k in (3, 7):
                Re, Ro = (R[0], R[1]) if k == 3 else (R[2], R[3])
                T = T0 if k == 3 else T1
                a(f"v_add_f32_dpp v{t1}, v{Re}, v{Re} quad_perm:[2,3,0,1] {FULL}")
                a(f"v_add_f32_dpp v{t2}, v{Ro}, v{Ro} quad_perm:[2,3,0,1] {FULL}")
                a(f"v_cndmask_b32 v{T}, v{t1}, v{t2}, s[52:53]")
        a(f"v_add_f32_dpp v{t1}, v{T0}, v{T0} quad_perm:[1,0,3,2] {FULL}")
        a(f"v_add_f32_dpp v{t2}, v{T1}, v{T1} quad_perm:[1,0,3,2] {FULL}")
        a(f"v_cndmask_b32 v{U[grp]}, v{t1}, v{t2}, s[50:51]")
    niter = 128//depth
    for k in range(8-ngroups): a(f"v_mov_b32 v{8+k}, v{8+k+ngroups}")
    for gidx in range(ngroups): a(f"v_mov_b32 v{8+8-ngroups+gidx}, v{U[gidx]}")
    a(f"""
    """)
    ts_dyn(16)
    a(f"""
    s_add_u32 s49, s49, 1
    s_cmp_eq_u32 s49, {niter-1}
    s_cselect_b32 s36, s44, s36
    s_cselect_b32 s37, s45, s37
    s_cmp_lt_u32 s49, {niter}
    s_cbranch_scc1 L_kloop
    """)
    stamp(2)
    c1 = f2u(128**-0.5*LOG2E)
    a(f"""
    v_max3_f32 v32, v8, v9, v10
    v_max3_f32 v32, v32, v11, v12
    v_max3_f32 v32, v32, v13, v14
    v_max_f32 v32, v32, v15
    """)
    allreduce("v_max_f32", 32)
    a(f"v_mov_b32 v33, {c1:#x}\n v_mul_f32 v32, v33, v32")
    for k in range(8): a(f"v_fma_f32 v{8+k}, v{8+k}, v33, -v32")
    for k in range(8): a(f"v_exp_f32 v{8+k}, v{8+k}")
    a(f"""
    v_add_f32 v34, v8, v9
    v_add_f32 v35, v10, v11
    v_add_f32 v36, v12, v13
    v_add_f32 v37, v14, v15
    v_add_f32 v34, v34, v35
    v_add_f32 v36, v36, v37
    v_add_f32 v34, v34, v36
    """)
    allreduce("v_add_f32", 34)
    for k in range(8): a(f"v_cvt_pk_bf16_f32 v{8+k}, v{8+k}, v{8+k}")
    a(f"""
    v_min_u32 v36, 0xfffffffe, v32
    v_min_u32 v37, 0xfffffffe, v34
    {"s_nop 0" if x_noml else "buffer_store_dwordx2 v[36:37], v47, s[40:43], 0 offen sc1"}
    v_mov_b32 v28, 0
    v_mov_b32 v29, 0
    v_mov_b32 v30, 0
    v_mov_b32 v31, 0
    """)
    if opt_h: a(f"""
    s_lshl_b32 s58, s34, 2
    s_add_u32 s58, s58, s57
    s_lshl_b32 s58, s58, 9
    s_add_u32 s58, s58, {WS_O}
    v_lshlrev_b32 v46, 5, v3             ; c*32
    v_lshl_add_u32 v46, v2, 4, v46       ; + lg*16
    v_add_u32 v46, s58, v46
    v_mov_b32 v55, {OOB:#x}
    v_cmp_gt_u32 vcc, 32, v1
    v_cndmask_b32 v46, v55, v46, vcc
    """)
    else: a(f"""
    s_lshl_b32 s58, s57, 9
    v_lshlrev_b32 v46, 5, v3             ; c*32
    v_lshl_add_u32 v46, v2, 4, v46       ; + lg*16
    v_add_u32 v46, s58, v46
    """)
    a(f"""
    v_and_b32 v48, 31, v1
    v_mul_u32_u24 v48, {cstride}, v48
    v_mov_b32 v49, 0x80000
    s_lshl_b32 s58, s33, 11
    s_add_u32 s58, s58, {WS_ML}
    v_lshl_add_u32 v51, v3, 7, s58
    s_mov_b32 s49, 0
L_vloop:
    """)
    def vpos(s, last):
        t = s & 15
        c = 4*rev2(t & 3) + rev2(t >> 2)
        P = 8 + (s >> 4)
        A = 20 + 4*(s & 1)
        a(f"s_waitcnt vmcnt({depth-1-s if last else depth-1})")
        if x_nov: a(f"v_add_u32 v28, {ringr(s, 0)}, v28")
        else:
            for r in range(4): a(f"v_and_b32_dpp v{A+r}, v{P}, v{16+r} row_newbcast:{c} {FULL}")
            mfma(28, A, ring(s))
        if not last:
            if vthr: a(f"s_waitcnt vmcnt({vthr-1})")
            sload(s, VF)
    for s_ in range(depth): vpos(s_, False)
    for k in range(8-ngroups): a(f"v_mov_b32 v{8+k}, v{8+k+ngroups}")
    ts_dyn(32)
    i_flag, i_ml = (niter-4, niter-3) if not x_noml else (99, 99)
    if (x_noflag or x_nocheck & 2) and not x_noml: i_flag = 99
    if ldsconf and not (x_noflag or x_nocheck & 2): a(f"""
    s_cmp_eq_u32 s49, {i_ml}
    s_cbranch_scc0 L_v_n2
    s_mov_b32 s59, 0
    v_mov_b32 v50, 0
L_v_fl:
    ds_read_b32 v49, v50 offset:{L_G+16}
    s_add_u32 s59, s59, 1
    s_waitcnt lgkmcnt(0)
    v_readfirstlane_b32 s58, v49
    s_cmp_ge_u32 s59, {spin_max*16}
    s_cbranch_scc1 L_v_fl_done
    s_cmp_lg_u32 s58, 0
    s_cbranch_scc1 L_v_fl_done
    s_sleep 4
    s_branch L_v_fl
    """)
    else:
        a(f"""
    s_cmp_eq_u32 s49, {i_flag}
    s_cbranch_scc0 L_v_n1
    buffer_load_dword v50, v48, s[64:67], 0 offen sc1
L_v_n1:
    s_cmp_eq_u32 s49, {i_ml}
    s_cbranch_scc0 L_v_n2
    s_mov_b32 s59, {spin_max if (x_noflag or x_nocheck & 2) else 0}
    s_waitcnt vmcnt({depth})
L_v_fl:
    v_cmp_gt_u32 vcc, v49, v50
    s_add_u32 s59, s59, 1
    s_cmp_ge_u32 s59, {spin_max}
    s_cbranch_scc1 L_v_fl_done
    s_cbranch_vccz L_v_fl_done
    s_sleep 32
    buffer_load_dword v50, v48, s[64:67], 0 offen sc1
    s_waitcnt vmcnt(0)
    s_branch L_v_fl
    """)
    a(f"""
L_v_fl_done:
    buffer_load_dwordx2 v[52:53], v51, s[40:43], 0 offen sc1
L_v_n2:
    s_add_u32 s49, s49, 1
    s_cmp_lt_u32 s49, {niter-1}
    s_cbranch_scc1 L_vloop
    s_mov_b32 s59, {spin_max if x_noml else 0}
    s_waitcnt vmcnt({depth})
L_v_ml:
    v_max_u32 v54, v52, v53
    v_cmp_eq_u32 vcc, -1, v54
    s_add_u32 s59, s59, 1
    s_cmp_ge_u32 s59, {spin_max}
    s_cbranch_scc1 L_v_ml_done
    s_cbranch_vccz L_v_ml_done
    s_sleep 8
    buffer_load_dwordx2 v[52:53], v51, s[40:43], 0 offen sc1
    s_waitcnt vmcnt(0)
    s_branch L_v_ml
L_v_ml_done:
    v_mov_b32 v54, v52
    """)
    for rr in (8, 4, 2, 1): a(f"v_max_f32_dpp v54, v54, v54 row_ror:{rr} {FULL}")
    a("v_sub_f32 v52, v52, v54\n v_exp_f32 v52, v52\n v_mul_f32 v53, v52, v53")
    for rr in (8, 4, 2, 1): a(f"v_add_f32_dpp v53, v53, v53 row_ror:{rr} {FULL}")
    a(f"""
    v_rcp_f32 v53, v53
    s_lshl_b32 s59, s32, 2
    s_add_u32 s59, s59, s57
    v_mul_f32 v52, v52, v53
    v_mul_f32 v52, v52, v56
    s_nop 0
    v_readlane_b32 s68, v52, s59
    """)
    for s_ in range(depth): vpos(s_, True)
    ts(35)
    if stamps: a("s_memtime s[90:91]")
    for k in range(4): a(f"v_mul_f32 v{28+k}, s68, v{28+k}")
    if opt_h:
        for k in range(4): a(f"v_min_u32 v{28+k}, 0xfffffffe, v{28+k}")
        a("buffer_store_dwordx4 v[28:31], v46, s[40:43], 0 offen sc1")
        stamp(3)
        a("s_barrier")
    else:
        stamp(3)
        a(f"""
    s_mov_b32 exec_hi, 0
    ds_write_b128 v46, v[28:31] offset:{L_OP}
    s_mov_b32 exec_hi, -1
    s_waitcnt lgkmcnt(0)
    s_barrier
    """)
    stamp(4)
    a("s_barrier\nL_pub:")
    stamp(5)
    a(f"""
    s_cmp_ge_u32 s3, 3
    s_cbranch_scc1 L_nopub
    v_lshlrev_b32 v46, 4, v0
    """)
    for w in range(4): a(f"ds_read_b128 v[{64+4*w}:{67+4*w}], v46 offset:{L_YP+2560*w}")
    a(f"""
    s_mul_i32 s54, s34, 2560
    v_add_u32 v47, s54, v46
    v_mov_b32 v45, {OOB:#x}
    v_cmp_gt_u32 vcc, 160, v0
    v_cndmask_b32 v47, v45, v47, vcc
    s_waitcnt lgkmcnt(0)
    """)
    for k in range(4): a(f"v_add_f32 v{64+k}, v{64+k}, v{68+k}\n v_add_f32 v{72+k}, v{72+k}, v{76+k}")
    for k in range(4): a(f"v_add_f32 v{64+k}, v{64+k}, v{72+k}")
    for k in range(4): a(f"v_min_u32 v{64+k}, 0xfffffffe, v{64+k}")
    a(f"""
    buffer_store_dwordx4 v[64:67], v47, s[40:43], 0 offen {ysflag}
L_nopub:
    """)
    stamp(6)
    def out_addr():
        srd(64, 24, 25, 2560)
        a(f"""
        s_mul_i32 s56, s54, 1280
        s_lshl_b32 s57, s55, 5
        s_add_u32 s56, s56, s57
        v_lshrrev_b32 v61, 2, v1
        v_lshl_add_u32 v61, v61, 1, s56
        v_and_b32 v62, 3, v1
        v_mov_b32 v43, {OOB:#x}
        v_cmp_eq_u32 vcc, 0, v62
        v_cndmask_b32 v61, v43, v61, vcc
        """)
    a(f"""
    s_cmp_ge_u32 s2, {0 if x_nofinal else 80}
    s_cbranch_scc1 L_fin
    s_cmp_ge_u32 s2, 40
    s_cselect_b32 s54, 1, 0              ; batch
    s_mul_i32 s55, s54, 40
    s_sub_u32 s55, s2, s55
    v_lshrrev_b32 v44, 2, v0             ; i
    v_and_b32 v45, 3, v0                 ; cq
    s_lshl_b32 s56, s55, 6
    v_lshl_add_u32 v45, v45, 4, s56
    s_mul_i32 s56, s54, {128*2560}
    v_mul_u32_u24 v46, 2560, v44
    v_add3_u32 v46, v46, v45, s56        ; Y address
    s_mov_b32 s49, 0
    """)
    if gpipe:
        def chk(r, nxt):
            a(f"""
            s_waitcnt vmcnt(1)
            v_max_u32 v60, v{r}, v{r+1}
            v_max3_u32 v60, v60, v{r+2}, v{r+3}
            v_cmp_eq_u32 vcc, -1, v60
            s_andn2_b64 exec, exec, vcc
            v_mov_b32 v56, v{r}
            v_mov_b32 v57, v{r+1}
            v_mov_b32 v58, v{r+2}
            v_mov_b32 v59, v{r+3}
            s_mov_b64 exec, vcc
            s_cbranch_execz L_g_done
            buffer_load_dwordx4 v[{r}:{r+3}], v46, s[40:43], 0 offen sc1
            """)
        a(f"""
        buffer_load_dwordx4 v[48:51], v46, s[40:43], 0 offen sc1
        """)
        out_addr()
        a(f"""
        buffer_load_dwordx4 v[52:55], v46, s[40:43], 0 offen sc1
L_g:
        """)
        chk(48, 52)
        if gsleep: a(f"s_sleep {gsleep}")
        chk(52, 48)
        if gsleep: a(f"s_sleep {gsleep}")
        a(f"""
        s_add_u32 s49, s49, 1
        s_cmp_lt_u32 s49, {spin_max}
        s_cbranch_scc1 L_g
        """)
    else:
        a(f"""
L_g:
    buffer_load_dwordx4 v[48:51], v46, s[40:43], 0 offen {ylflag}
    s_add_u32 s49, s49, 1
    s_waitcnt vmcnt(0)
    v_max_u32 v56, v48, v49
    v_max3_u32 v56, v56, v50, v51
    v_cmp_eq_u32 vcc, -1, v56
    s_cmp_ge_u32 s49, {spin_max}
    s_cbranch_scc1 L_g_done
    """)
        if gmask: a("s_and_b64 exec, exec, vcc\n s_cbranch_execnz L_g")
        else: a("s_cbranch_vccnz L_g")
    a(f"""
L_g_done:
    s_mov_b64 exec, -1
    """)
    R = 56 if gpipe else 48
    for rr in (8, 4):
        for k in range(4): a(f"v_add_f32_dpp v{R+k}, v{R+k}, v{R+k} row_ror:{rr} {FULL}")
    a(f"""
    v_lshlrev_b32 v44, 9, v3             ; cq*4*128
    s_lshl_b32 s56, s3, 4
    v_lshl_add_u32 v45, v2, 2, s56       ; (wave*4+row)*4
    v_add_u32 v44, v44, v45
    s_mov_b32 exec_lo, 0x000f000f
    s_mov_b32 exec_hi, 0x000f000f
    """)
    for k in range(4): a(f"ds_write_b32 v44, v{R+k} offset:{L_RP+128*k}")
    a(f"""
    s_mov_b64 exec, -1
    s_waitcnt lgkmcnt(0)
    s_barrier
    s_cmp_eq_u32 s3, 0
    s_cbranch_scc0 L_fin
    v_lshlrev_b32 v44, 5, v1
    ds_read_b128 v[64:67], v44 offset:{L_RP}
    ds_read_b128 v[68:71], v44 offset:{L_RP+16}
    """)
    if not gpipe: out_addr()
    a(f"""
    s_waitcnt lgkmcnt(0)
    v_add_f32 v64, v64, v65
    v_add_f32 v66, v66, v67
    v_add_f32 v68, v68, v69
    v_add_f32 v70, v70, v71
    v_add_f32 v64, v64, v66
    v_add_f32 v68, v68, v70
    v_add_f32 v64, v64, v68
    v_add_f32_dpp v64, v64, v64 quad_perm:[1,0,3,2] {FULL}
    v_add_f32_dpp v64, v64, v64 quad_perm:[2,3,0,1] {FULL}
    v_cvt_pk_bf16_f32 v64, v64, v64
    buffer_store_short v64, v61, s[64:67], 0 offen {oflag}
L_fin:
    """)
    if stamps:
        a(f"""
        s_memrealtime s[86:87]
        s_getreg_b32 s54, hwreg(HW_REG_XCC_ID)
        s_waitcnt lgkmcnt(0)
        s_lshl_b32 s55, s2, 3
        s_add_u32 s55, s55, s3
        s_lshl_b32 s55, s55, 6
        s_add_u32 s55, s55, {WS_STAMP}
        s_mov_b32 s40, s28
        s_mov_b32 s41, s29
        s_mov_b32 s42, 0x400000
        s_mov_b32 s43, 0x20000
        v_mov_b32 v48, s72
        v_mov_b32 v49, s74
        v_mov_b32 v50, s76
        v_mov_b32 v51, s78
        v_mov_b32 v52, s80
        v_mov_b32 v53, s82
        v_mov_b32 v54, s84
        v_mov_b32 v55, s86
        v_mov_b32 v56, s54
        v_mov_b32 v45, s55
        v_mov_b32 v43, {OOB:#x}
        v_cmp_eq_u32 vcc, 0, v1
        v_cndmask_b32 v45, v43, v45, vcc
        buffer_store_dwordx4 v[48:51], v45, s[40:43], 0 offen
        buffer_store_dwordx4 v[52:55], v45, s[40:43], 0 offen offset:16
        v_mov_b32 v57, s88
        v_mov_b32 v58, s90
        v_mov_b32 v59, s92
        buffer_store_dwordx4 v[56:59], v45, s[40:43], 0 offen offset:32
        s_lshl_b32 s55, s2, 3
        s_add_u32 s55, s55, s3
        s_lshl_b32 s55, s55, 8
        s_add_u32 s55, s55, {WS_STAMP + 0x40000}
        v_lshl_add_u32 v45, v1, 2, s55
        buffer_store_dword v63, v45, s[40:43], 0 offen
        """)
    a("L_end:\n s_endpgm")
    text, n = hz.fix(a.text())
    return wrap(text, 256, 512, LDS_BYTES, vgpr=256, sgpr=100, DESC=DESCRIPTION), n

if __name__ == "__main__":
    from build import build
    import json
    names = []
    for spec in sys.argv[1:]:
        kw = {}
        name, _, rest = spec.partition(":")
        for p in rest.split(","):
            if not p: continue
            k, v = p.split("=")
            kw[k] = v if k in ("sflag", "wflag", "woflag", "vflag", "wdflag", "oflag", "ysflag", "ylflag") else int(v, 0)
        for k in ("sflag", "wflag", "woflag", "vflag", "wdflag", "oflag", "ysflag", "ylflag"):
            if kw.get(k) == "none": kw[k] = ""
            if k in kw: kw[k] = kw[k].replace("+", " ")
        t, n = gen(**kw)
        open(f"work/{name}.s", "w").write(t)
        build(f"work/{name}.s")
        print(name, "nops inserted:", n, "lines:", t.count("\n"))
        names.append(name)
    print(json.dumps(["work/bench.py", "cdna_kernels/cdna_launch.py", "cdna_kernels/cdna_unwritten_srd_check.py", "gated_mix__mha_block_cached__swiglu_ffn__decode_np.py"] + sum([[f"work/{n}.co", f"work/{n}.s"] for n in names], [])))
```
